```python
import torch

def _softmax(x, axis=-1):
    return torch.softmax(x, dim=axis)

def _gelu(x):
    return torch.nn.functional.gelu(x, approximate='tanh')

def _silu(x):
    return torch.nn.functional.silu(x)

def _sigmoid(x):
    return torch.sigmoid(x)

def _layernorm(x, axis=-1, eps=1e-05):
    m = x.mean(dim=axis, keepdim=True)
    v = x.var(dim=axis, keepdim=True, unbiased=False)
    return (x - m) / torch.sqrt(v + eps)

def _scatter_add(tgt, idx, src, axis=0):
    return tgt.clone().index_add_(axis, idx, src)

def _segment_sum(src, seg, n):
    out = torch.zeros((n,) + src.shape[1:], dtype=src.dtype)
    return out.index_add_(0, seg, src)

def _pad(x, pw):
    flat = tuple((v for pair in reversed(pw) for v in pair))
    return torch.nn.functional.pad(x, flat)
kernel_name = 'parallel_sum__sliding_local_dilated__mixer_gmlp__prompt'

def setup_inputs():

    _w = lambda a: (lambda t: t.to(torch.bfloat16) if t.is_floating_point() else t)(torch.as_tensor(a))

    def _A_setup():
        B, S, D = (1, 2048, 448)
        return {'x': _w((lambda *s: torch.randn(*s, dtype=torch.bfloat16) * 0.05)(B, S, D)), 'wqkv': _w((lambda *s: torch.randn(*s, dtype=torch.bfloat16) * 0.1)(D, 3 * D)), 'wo': _w((lambda *s: torch.randn(*s, dtype=torch.bfloat16) * 0.05)(D, D))}
    _A_in = _A_setup()

    def _B_setup():
        B, S, D, F = (1, 2048, 448, 1792)
        Fh = F // 2
        return {'x': _w((lambda *s: torch.randn(*s, dtype=torch.bfloat16) * 0.05)(B, S, D)), 'w_in': _w((lambda *s: torch.randn(*s, dtype=torch.bfloat16) * 0.4)(D, 2 * Fh)), 'w_sp': _w(0.01 * (lambda *s: torch.randn(*s, dtype=torch.bfloat16) * 0.4)(S, S)), 'b_sp': _w(1.0 + 0.01 * (lambda *s: torch.randn(*s, dtype=torch.bfloat16) * 0.05)(S)), 'w_out': _w((lambda *s: torch.randn(*s, dtype=torch.bfloat16) * 0.05)(Fh, D))}
    _B_in = _B_setup()
    return {'A_x': _A_in['x'], 'A_wqkv': _A_in['wqkv'], 'A_wo': _A_in['wo'], 'B_x': _B_in['x'], 'B_w_in': _B_in['w_in'], 'B_w_sp': _B_in['w_sp'], 'B_b_sp': _B_in['b_sp'], 'B_w_out': _B_in['w_out']}

def reference(A_x, A_wqkv, A_wo, B_x, B_w_in, B_w_sp, B_b_sp, B_w_out):

    def _A_ref(x, wqkv, wo):
        B, S, D = x.shape
        H = 16
        Dh = D // H
        W, dil = (8, 2)
        qkv = (lambda x, *d: x.permute(*d))((x @ wqkv).reshape(B, S, 3, H, Dh), 2, 0, 3, 1, 4)
        q, k, v = (qkv[0], qkv[1], qkv[2])
        scale = Dh ** (-0.5)
        pos = torch.arange(S)
        off = torch.arange(W) * dil
        idx = pos[:, None] - off[None, :]
        mask = idx >= 0
        idx_c = torch.where(mask, idx, 0).reshape(-1)
        kg = k[:, :, idx_c, :].reshape(B, H, S, W, Dh)
        vg = v[:, :, idx_c, :].reshape(B, H, S, W, Dh)
        logits = torch.einsum('bhsd,bhswd->bhsw', q, kg) * scale
        logits = torch.where(mask[None, None, :, :], logits, -1000000000.0)
        attn = _softmax(logits, axis=-1)
        o = torch.einsum('bhsw,bhswd->bhsd', attn, vg)
        return (lambda x, *d: x.permute(*d))(o, 0, 2, 1, 3).reshape(B, S, D) @ wo

    def _B_ref(x, w_in, w_sp, b_sp, w_out):
        B, S, D = x.shape
        F = w_in.shape[-1]
        Fh = F // 2
        z = _gelu(torch.einsum('bsd,df->bsf', x, w_in))
        z1 = z[..., :Fh].clone()
        z2 = _layernorm(z[..., Fh:], axis=-1)
        g = torch.einsum('ts,bsf->btf', w_sp, z2) + b_sp[None, :, None]
        return torch.einsum('bsf,fd->bsd', z1 * g, w_out)
    x = A_x
    xn = _layernorm(x, axis=-1)
    return x + _A_ref(xn, A_wqkv, A_wo) + _B_ref(xn, B_w_in, B_w_sp, B_b_sp, B_w_out)
```

```python
class Asm:
    def __init__(self):
        self.lines = []
        self.uid = 0
    def __call__(self, s):
        for l in s.split("\n"):
            l = l.strip()
            if l:
                self.lines.append("    " + l if not l.endswith(":") else l)
    def label(self, name):
        self.lines.append(name + ":")
    def newlabel(self, p="L"):
        self.uid += 1
        return f"{p}_{self.uid}"
    def comment(self, s):
        self.lines.append("    ; " + s)
    def text(self):
        return "\n".join(self.lines) + "\n"

def v(i, n=1):
    return f"v{i}" if n == 1 else f"v[{i}:{i+n-1}]"
def a(i, n=1):
    return f"a{i}" if n == 1 else f"a[{i}:{i+n-1}]"
def s(i, n=1):
    return f"s{i}" if n == 1 else f"s[{i}:{i+n-1}]"

def kernel_header(name):
    return f""".globl {name}
.p2align 8
.type {name},@function
{name}:
"""

def kernel_desc(name, vgpr, sgpr=102, accum=None, extra=""):
    if accum is None:
        accum = (vgpr + 3) // 4 * 4
    return f""".p2align 6
.amdhsa_kernel {name}
  .amdhsa_next_free_vgpr {vgpr}
  .amdhsa_next_free_sgpr {sgpr}
  .amdhsa_accum_offset {accum}
  .amdhsa_group_segment_fixed_size 0
  .amdhsa_kernarg_size 88
  .amdhsa_user_sgpr_count 2
  .amdhsa_user_sgpr_kernarg_segment_ptr 1
  .amdhsa_system_sgpr_workgroup_id_x 1
{extra}.end_amdhsa_kernel
"""

def srd(A, dst, base, nbytes, off=0):
    if off:
        A(f"s_add_u32 s{dst}, s{base}, {hex(off)}")
        A(f"s_addc_u32 s{dst+1}, s{base+1}, 0")
    else:
        A(f"s_mov_b32 s{dst}, s{base}")
        A(f"s_mov_b32 s{dst+1}, s{base+1}")
    A(f"s_mov_b32 s{dst+2}, {hex(nbytes)}")
    A(f"s_mov_b32 s{dst+3}, 0x20000")
```

```python
from asmlib import *
import sys
S, D, F, FH, H, DH = 2048, 448, 1792, 896, 16, 28
WS_XN   = 0
WS_WQT  = 4 << 20
WS_WIT  = 8 << 20
WS_WOT  = 12 << 20
WS_WUT  = 16 << 20
WS_QKV  = 20 << 20
WS_Z    = 28 << 20
WS_Z2T  = 40 << 20
WS_O    = 48 << 20
WS_U    = 52 << 20
WS_T    = 60 << 20
KA = dict(x=0, wqkv=8, wo=16, bx=24, w_in=32, w_sp=40, b_sp=48, w_out=56, out=64, dbg=72, ws=80)

kernels = []

def guard(A, n):
    A(f"s_cmp_ge_u32 s2, {n}")
    A(f"s_cbranch_scc1 {A.end}")

def transpose_kernel(name, src_ka, K, N, ws_off):
    A = Asm(); A.end = name + "_end"
    n_el = K * N
    nwg = n_el // 256
    guard(A, nwg)
    A(f"s_load_dwordx2 s[4:5], s[0:1], {src_ka}")
    A(f"s_load_dwordx2 s[6:7], s[0:1], {KA['ws']}")
    A("s_waitcnt lgkmcnt(0)")
    srd(A, 8, 4, n_el * 2)
    srd(A, 12, 6, n_el * 2, ws_off)
    A("s_lshl_b32 s3, s2, 8")
    A("v_add_u32 v1, s3, v0")
    magic = (1 << 32) // K + 1
    A(f"s_mov_b32 s16, {hex(magic)}")
    A("v_mul_hi_u32 v2, v1, s16")
    A(f"s_mov_b32 s17, {K}")
    A("v_mul_lo_u32 v3, v2, s17")
    A("v_sub_u32 v3, v1, v3")
    A(f"s_mov_b32 s18, {N}")
    A("v_mul_lo_u32 v4, v3, s18")
    A("v_add_u32 v4, v4, v2")
    A("v_lshlrev_b32 v4, 1, v4")
    A("v_lshlrev_b32 v5, 1, v1")
    A("buffer_load_ushort v6, v4, s[8:11], 0 offen")
    A("s_waitcnt vmcnt(0)")
    A("buffer_store_short v6, v5, s[12:15], 0 offen")
    A.label(A.end)
    A("s_endpgm")
    kernels.append((name, nwg, 256, 0, A.text(), 16))

def wave_sum(A, vr, tmp, addr):
    for x in (1, 2, 4, 8, 16, 32):
        A(f"v_xor_b32 v{addr}, {x}, v0")
        A(f"v_lshlrev_b32 v{addr}, 2, v{addr}")
        A(f"ds_bpermute_b32 v{tmp}, v{addr}, v{vr}")
        A("s_waitcnt lgkmcnt(0)")
        A(f"v_add_f32 v{vr}, v{vr}, v{tmp}")

def ln_kernel(name, src_is_ws, src_off, row_stride_b, ncols, dst_off, transposed):
    A = Asm(); A.end = name + "_end"
    guard(A, S)
    A(f"s_load_dwordx2 s[4:5], s[0:1], {KA['ws'] if src_is_ws else KA['x']}")
    A(f"s_load_dwordx2 s[6:7], s[0:1], {KA['ws']}")
    A("s_waitcnt lgkmcnt(0)")
    srd(A, 8, 4, 0x10000000 if src_is_ws else S * D * 2, src_off)
    srd(A, 12, 6, 0x1000000, dst_off)
    nd = ncols // 2
    nj = (nd + 63) // 64
    A(f"s_mul_i32 s3, s2, {row_stride_b}")
    A("v_lshlrev_b32 v1, 2, v0")
    A("v_add_u32 v1, s3, v1")
    for j in range(nj):
        A(f"v_mov_b32 v{10+j}, 0")
    for j in range(nj):
        last_partial = (j + 1) * 64 > nd
        if last_partial:
            A(f"v_cmp_gt_u32 vcc, {nd - j*64}, v0")
            A("s_and_saveexec_b64 s[20:21], vcc")
        A(f"buffer_load_dword v{10+j}, v1, s[8:11], 0 offen offset:{j*256}")
        if last_partial:
            A("s_mov_b64 exec, s[20:21]")
    A("s_waitcnt vmcnt(0)")
    A("v_mov_b32 v2, 0")
    for j in range(nj):
        A(f"v_lshlrev_b32 v{20+j}, 16, v{10+j}")
        A(f"v_and_b32 v{30+j}, 0xffff0000, v{10+j}")
        A(f"v_add_f32 v2, v2, v{20+j}")
        A(f"v_add_f32 v2, v2, v{30+j}")
    wave_sum(A, 2, 3, 4)
    A(f"v_mul_f32 v2, {1.0/ncols!r}, v2")
    A("v_mov_b32 v5, 0")
    for j in range(nj):
        A(f"v_sub_f32 v{20+j}, v{20+j}, v2")
        A(f"v_sub_f32 v{30+j}, v{30+j}, v2")
        if (j + 1) * 64 > nd:
            A(f"v_cmp_gt_u32 vcc, {nd - j*64}, v0")
            A("s_nop 1")
            A(f"v_cndmask_b32 v{20+j}, 0, v{20+j}, vcc")
            A(f"v_cndmask_b32 v{30+j}, 0, v{30+j}, vcc")
        A(f"v_fmac_f32 v5, v{20+j}, v{20+j}")
        A(f"v_fmac_f32 v5, v{30+j}, v{30+j}")
    wave_sum(A, 5, 3, 4)
    A(f"v_mul_f32 v5, {1.0/ncols!r}, v5")
    A("v_add_f32 v5, 0x3727c5ac, v5")
    A("v_rsq_f32 v5, v5")
    A("s_nop 1")
    for j in range(nj):
        A(f"v_mul_f32 v{20+j}, v{20+j}, v5")
        A(f"v_mul_f32 v{30+j}, v{30+j}, v5")
        A(f"v_cvt_pk_bf16_f32 v{10+j}, v{20+j}, v{30+j}")
    if not transposed:
        A(f"s_mul_i32 s3, s2, {ncols*2}")
        A("v_lshlrev_b32 v1, 2, v0")
        A("v_add_u32 v1, s3, v1")
        for j in range(nj):
            lp = (j + 1) * 64 > nd
            if lp:
                A(f"v_cmp_gt_u32 vcc, {nd - j*64}, v0")
                A("s_and_saveexec_b64 s[20:21], vcc")
            A(f"buffer_store_dword v{10+j}, v1, s[12:15], 0 offen offset:{j*256}")
            if lp:
                A("s_mov_b64 exec, s[20:21]")
    else:
        A("s_lshl_b32 s3, s2, 1")
        A(f"v_lshlrev_b32 v1, 13, v0")
        A("v_add_u32 v1, s3, v1")
        for j in range(nj):
            A(f"v_add_u32 v6, {j*64*8192}, v1")
            A(f"buffer_store_short v{10+j}, v6, s[12:15], 0 offen")
            A(f"v_add_u32 v6, {j*64*8192+4096}, v1")
            A(f"buffer_store_short_d16_hi v{10+j}, v6, s[12:15], 0 offen")
    A.label(A.end)
    A("s_endpgm")
    kernels.append((name, S, 64, 0, A.text(), 48))

def gemm_kernel(name, M, N, segs, epi):
    A = Asm(); A.end = name + "_end"
    nbx = N // 32
    nwg = (M // 32) * nbx
    guard(A, nwg)
    A(f"s_load_dwordx2 s[40:41], s[0:1], {KA['ws']}")
    A(f"s_load_dwordx2 s[42:43], s[0:1], {KA['x']}")
    A(f"s_load_dwordx2 s[44:45], s[0:1], {KA['w_sp']}")
    A(f"s_load_dwordx2 s[46:47], s[0:1], {KA['b_sp']}")
    A(f"s_load_dwordx2 s[48:49], s[0:1], {KA['out']}")
    magic = (1 << 32) // nbx + 1
    A(f"s_mul_hi_u32 s4, s2, {hex(magic)}")
    A(f"s_mul_i32 s5, s4, {nbx}")
    A("s_sub_u32 s5, s2, s5")
    A("s_lshl_b32 s4, s4, 5")
    A("s_lshl_b32 s5, s5, 5")
    A("v_and_b32 v1, 15, v0")
    A("v_lshrrev_b32 v2, 4, v0")
    for i in range(16):
        A(f"v_mov_b32 v{60+i}, 0")
    A("s_waitcnt lgkmcnt(0)")
    ptr = dict(ws=40, x=42, w_sp=44)
    for (ap, aoff, lda, bp, boff, ldb, K) in segs:
        srd(A, 8, ptr[ap], 0x10000000, aoff)
        srd(A, 12, ptr[bp], 0x10000000, boff)
        A("v_add_u32 v4, s4, v1")
        A(f"s_mov_b32 s16, {lda}")
        A("v_mul_lo_u32 v4, v4, s16")
        A("v_lshlrev_b32 v3, 4, v2")
        A("v_add_u32 v4, v4, v3")
        A(f"v_add_u32 v5, {16*lda}, v4")
        A("v_add_u32 v6, s5, v1")
        A(f"s_mov_b32 s16, {ldb}")
        A("v_mul_lo_u32 v6, v6, s16")
        A("v_add_u32 v6, v6, v3")
        A(f"v_add_u32 v7, {16*ldb}, v6")
        A("s_mov_b32 s10, 0x10000000")
        A("s_mov_b32 s17, 0")
        L = A.newlabel(name + "_k")
        A.label(L)
        A("buffer_load_dwordx4 v[20:23], v4, s[8:11], s17 offen")
        A("buffer_load_dwordx4 v[24:27], v5, s[8:11], s17 offen")
        A("buffer_load_dwordx4 v[28:31], v6, s[12:15], s17 offen")
        A("buffer_load_dwordx4 v[32:35], v7, s[12:15], s17 offen")
        A("s_waitcnt vmcnt(0)")
        A("v_mfma_f32_16x16x32_bf16 v[60:63], v[20:23], v[28:31], v[60:63]")
        A("v_mfma_f32_16x16x32_bf16 v[64:67], v[20:23], v[32:35], v[64:67]")
        A("v_mfma_f32_16x16x32_bf16 v[68:71], v[24:27], v[28:31], v[68:71]")
        A("v_mfma_f32_16x16x32_bf16 v[72:75], v[24:27], v[32:35], v[72:75]")
        A("s_add_u32 s17, s17, 64")
        A(f"s_cmp_lt_u32 s17, {K*2}")
        A(f"s_cbranch_scc1 {L}")
    A("s_nop 15")
    A("v_lshlrev_b32 v8, 2, v2")
    A("v_add_u32 v8, s4, v8")
    A("v_add_u32 v9, s5, v1")
    epi(A, N)
    A.label(A.end)
    A("s_endpgm")
    kernels.append((name, nwg, 64, 0, A.text(), 96))

def each_elem():
    for ti in range(2):
        for tj in range(2):
            for r in range(4):
                yield ti, tj, r, 60 + (ti * 2 + tj) * 4 + r

def addr(A, dst, ti, tj, r, ld_elems, esz):
    A(f"v_add_u32 v{dst}, {16*ti+r}, v8")
    A(f"s_mov_b32 s16, {ld_elems}")
    A(f"v_mul_lo_u32 v{dst}, v{dst}, s16")
    A(f"v_add_u32 v{dst}, v{dst}, v9")
    A(f"v_add_u32 v{dst}, {16*tj}, v{dst}")
    A(f"v_lshlrev_b32 v{dst}, {1 if esz==2 else 2}, v{dst}")

def round_bf16(A, r):
    A(f"v_cvt_pk_bf16_f32 v{r}, v{r}, v{r}")
    A(f"v_lshlrev_b32 v{r}, 16, v{r}")

def gelu(A, x, t1, t2):
    c0 = -2.0 * 1.4426950408889634 * 0.7978845608028654
    c1 = c0 * 0.044715
    A(f"v_mul_f32 v{t1}, v{x}, v{x}")
    A(f"v_mov_b32 v{t2}, {c0!r}")
    A(f"v_fmac_f32 v{t2}, {c1!r}, v{t1}")
    A(f"v_mul_f32 v{t2}, v{t2}, v{x}")
    A(f"v_exp_f32 v{t2}, v{t2}")
    A("s_nop 0")
    A(f"v_add_f32 v{t2}, 1.0, v{t2}")
    A(f"v_rcp_f32 v{t2}, v{t2}")
    A("s_nop 0")
    A(f"v_mul_f32 v{x}, v{x}, v{t2}")

def epi_store(off, dogelu):
    def f(A, N):
        srd(A, 20, 40, 0x1000000, off)
        for ti, tj, r, reg in each_elem():
            if dogelu:
                round_bf16(A, reg)
                gelu(A, reg, 40, 41)
            A(f"v_cvt_pk_bf16_f32 v{reg}, v{reg}, v{reg}")
            addr(A, 42, ti, tj, r, N, 2)
            A(f"buffer_store_short v{reg}, v42, s[20:23], 0 offen")
    return f

def epi_u(A, N):
    srd(A, 20, 40, 0x1000000, WS_U)
    srd(A, 24, 40, 0x1000000, WS_Z)
    srd(A, 28, 46, S * 2)
    for ti, tj, r, reg in each_elem():
        A(f"v_add_u32 v43, {16*ti+r}, v8")
        A("v_lshlrev_b32 v43, 1, v43")
        A("buffer_load_ushort v44, v43, s[28:31], 0 offen")
        addr(A, 42, ti, tj, r, F, 2)
        A("buffer_load_ushort v45, v42, s[24:27], 0 offen")
        A("s_waitcnt vmcnt(0)")
        A("v_lshlrev_b32 v44, 16, v44")
        A("v_lshlrev_b32 v45, 16, v45")
        round_bf16(A, reg)
        A(f"v_add_f32 v{reg}, v{reg}, v44")
        round_bf16(A, reg)
        A(f"v_mul_f32 v{reg}, v{reg}, v45")
        A(f"v_cvt_pk_bf16_f32 v{reg}, v{reg}, v{reg}")
        addr(A, 42, ti, tj, r, N, 2)
        A(f"buffer_store_short v{reg}, v42, s[20:23], 0 offen")

def epi_out(A, N):
    srd(A, 20, 48, S * D * 2)
    srd(A, 24, 42, S * D * 2)
    for ti, tj, r, reg in each_elem():
        addr(A, 42, ti, tj, r, N, 2)
        A("buffer_load_ushort v45, v42, s[24:27], 0 offen")
        A("s_waitcnt vmcnt(0)")
        A("v_lshlrev_b32 v45, 16, v45")
        A(f"v_add_f32 v{reg}, v{reg}, v45")
        A(f"v_cvt_pk_bf16_f32 v{reg}, v{reg}, v{reg}")
        A(f"buffer_store_short v{reg}, v42, s[20:23], 0 offen")

def attn_kernel(name):
    A = Asm(); A.end = name + "_end"
    nwg = S * H // 256
    guard(A, nwg)
    A(f"s_load_dwordx2 s[4:5], s[0:1], {KA['ws']}")
    A("s_waitcnt lgkmcnt(0)")
    srd(A, 8, 4, S * 1344 * 2, WS_QKV)
    srd(A, 12, 4, S * D * 2, WS_O)
    A("s_lshl_b32 s3, s2, 8")
    A("v_add_u32 v1, s3, v0")
    A("v_lshrrev_b32 v2, 4, v1")
    A("v_and_b32 v3, 15, v1")
    A("v_mul_u32_u24 v4, 56, v3")
    A("v_mul_u32_u24 v5, 2688, v2")
    A("v_add_u32 v5, v5, v4")
    for j in range(7):
        A(f"buffer_load_dwordx2 v[{20+2*j}:{21+2*j}], v5, s[8:11], 0 offen offset:{8*j}")
    A("s_waitcnt vmcnt(0)")
    for j in range(14):
        A(f"v_lshlrev_b32 v{40+2*j}, 16, v{20+j}")
        A(f"v_and_b32 v{41+2*j}, 0xffff0000, v{20+j}")
    scale = DH ** -0.5
    for w in range(8):
        A(f"v_subrev_u32 v6, {2*w}, v2")
        A("v_max_i32 v7, 0, v6")
        A("v_mul_u32_u24 v7, 2688, v7")
        A("v_add_u32 v7, v7, v4")
        for j in range(7):
            A(f"buffer_load_dwordx2 v[{20+2*j}:{21+2*j}], v7, s[8:11], 0 offen offset:{896+8*j}")
        A("s_waitcnt vmcnt(0)")
        A(f"v_mov_b32 v{70+w}, 0")
        for j in range(14):
            A(f"v_lshlrev_b32 v8, 16, v{20+j}")
            A(f"v_and_b32 v9, 0xffff0000, v{20+j}")
            A(f"v_fmac_f32 v{70+w}, v8, v{40+2*j}")
            A(f"v_fmac_f32 v{70+w}, v9, v{41+2*j}")
        A(f"v_mul_f32 v{70+w}, {scale!r}, v{70+w}")
        A("v_cmp_gt_i32 vcc, 0, v6")
        A("v_mov_b32 v8, 0xce6e6b28")
        A("s_nop 0")
        A(f"v_cndmask_b32 v{70+w}, v{70+w}, v8, vcc")
    A("v_mov_b32 v10, v70")
    for w in range(1, 8):
        A(f"v_max_f32 v10, v10, v{70+w}")
    A("v_mov_b32 v11, 0")
    for w in range(8):
        A(f"v_sub_f32 v{70+w}, v{70+w}, v10")
        A(f"v_mul_f32 v{70+w}, 0x3fb8aa3b, v{70+w}")
        A(f"v_exp_f32 v{70+w}, v{70+w}")
        A("s_nop 0")
        A(f"v_add_f32 v11, v11, v{70+w}")
    A("v_rcp_f32 v11, v11")
    A("s_nop 0")
    for w in range(8):
        A(f"v_mul_f32 v{70+w}, v{70+w}, v11")
    for j in range(28):
        A(f"v_mov_b32 v{40+j}, 0")
    for w in range(8):
        A(f"v_subrev_u32 v6, {2*w}, v2")
        A("v_max_i32 v7, 0, v6")
        A("v_mul_u32_u24 v7, 2688, v7")
        A("v_add_u32 v7, v7, v4")
        for j in range(7):
            A(f"buffer_load_dwordx2 v[{20+2*j}:{21+2*j}], v7, s[8:11], 0 offen offset:{1792+8*j}")
        A("s_waitcnt vmcnt(0)")
        for j in range(14):
            A(f"v_lshlrev_b32 v8, 16, v{20+j}")
            A(f"v_and_b32 v9, 0xffff0000, v{20+j}")
            A(f"v_fmac_f32 v{40+2*j}, v8, v{70+w}")
            A(f"v_fmac_f32 v{41+2*j}, v9, v{70+w}")
    for j in range(14):
        A(f"v_cvt_pk_bf16_f32 v{20+j}, v{40+2*j}, v{41+2*j}")
    A("v_mul_u32_u24 v5, 896, v2")
    A("v_add_u32 v5, v5, v4")
    for j in range(7):
        A(f"buffer_store_dwordx2 v[{20+2*j}:{21+2*j}], v5, s[12:15], 0 offen offset:{8*j}")
    A.label(A.end)
    A("s_endpgm")
    kernels.append((name, nwg, 256, 0, A.text(), 96))

transpose_kernel("t0_kernel", KA['wqkv'], 448, 1344, WS_WQT)
transpose_kernel("t1_kernel", KA['w_in'], 448, 1792, WS_WIT)
transpose_kernel("t2_kernel", KA['wo'], 448, 448, WS_WOT)
transpose_kernel("t3_kernel", KA['w_out'], 896, 448, WS_WUT)
ln_kernel("ln1_kernel", False, 0, 896, 448, WS_XN, False)
gemm_kernel("g1a_kernel", S, 1344, [("ws", WS_XN, 896, "ws", WS_WQT, 896, 448)], epi_store(WS_QKV, False))
gemm_kernel("g1b_kernel", S, 1792, [("ws", WS_XN, 896, "ws", WS_WIT, 896, 448)], epi_store(WS_Z, True))
ln_kernel("ln2_kernel", True, WS_Z + 896 * 2, 1792 * 2, 896, WS_Z2T, True)
attn_kernel("att_kernel")
gemm_kernel("g2_kernel", S, 896, [("w_sp", 0, 4096, "ws", WS_Z2T, 4096, 2048)], epi_u)
gemm_kernel("g3_kernel", S, 448, [("ws", WS_O, 896, "ws", WS_WOT, 896, 448), ("ws", WS_U, 1792, "ws", WS_WUT, 1792, 896)], epi_out)

ndummy = int(sys.argv[2]) if len(sys.argv) > 2 else 0
out = []
for k in kernels:
    out.append(f"; @launch kernel={k[0]} grid=({k[1]},1,1) block=({k[2]},1,1) lds={k[3]}")
for i in range(ndummy):
    out.append(f"; @launch kernel=dummy_kernel grid=(256,1,1) block=(256,1,1) lds=0")
out.append('.amdgcn_target "amdgcn-amd-amdhsa--gfx950"')
out.append(".text")
for k in kernels:
    out.append(kernel_header(k[0]) + k[4])
if ndummy:
    out.append(kernel_header("dummy_kernel") + "    s_endpgm\n")
out.append('.section .rodata,"a"')
for k in kernels:
    out.append(kernel_desc(k[0], k[5]))
if ndummy:
    out.append(kernel_desc("dummy_kernel", 32))
open(sys.argv[1], "w").write("\n".join(out))
```

```python
from gl import *

SLOT = 30720
NSLOT = 5
K2_LDS = SLOT * NSLOT
NST = 16
ROT = True
EXP = ''
S_W, S_TB, S_FB, S_KH = 3, 52, 53, 54
SRD_WSP, SRD_WS, SRD_BSP = 32, 44, 36

def wg_map_p2(A, t0):
    A(f"s_and_b32 s{S_KH}, s2, 1")
    A(f"s_bfe_u32 s{S_TB}, s2, 0x20001")
    A(f"s_lshl_b32 s{S_TB}, s{S_TB}, 2")
    A(f"s_bfe_u32 s{t0}, s2, 0x20003")
    A(f"s_add_u32 s{S_TB}, s{S_TB}, s{t0}")
    A(f"s_lshr_b32 s{S_FB}, s2, 5")

def loader(A, ell, P):
    A(f"s_lshl_b32 s68, s{S_FB}, 1")
    A(f"s_and_b32 s69, s{S_TB}, 1")
    A(f"s_add_u32 s68, s68, s69")
    if not ROT: A("s_mov_b32 s68, 0")
    if ell < 2:
        A("v_lshrrev_b32 v8, 3, v0")
        A("v_lshrrev_b32 v9, 4, v0")
        A("v_and_b32 v10, 7, v0")
        A("v_xor_b32 v11, v10, v9")
        A("v_xor_b32 v12, 4, v11")
        A("v_lshlrev_b32 v8, 12, v8")
        A("v_lshl_add_u32 v13, v11, 4, v8")
        A("v_lshl_add_u32 v14, v12, 4, v8")
        A("v_add_u32 v14, 32768, v14")
        A(f"s_lshl_b32 s60, s{S_TB}, 19")
        A(f"s_lshl_b32 s61, s{S_KH}, 11")
        A(f"s_add_u32 s60, s60, s61")
        if ell: A(f"s_add_u32 s60, s60, {4*65536}")
        A(f"s_lshl_b32 s61, s68, 7")
        A(f"s_add_u32 s60, s60, s61")
        A(f"s_mov_b32 s70, 128")
        for m in range(1, 4): A(f"s_add_u32 s{60+m}, s60, {m*65536}")
        npc = 8
    else:
        A("v_lshlrev_b32 v13, 4, v0")
        A(f"s_mul_i32 s60, s{S_KH}, {32*56*1024}")
        A(f"s_mul_i32 s61, s{S_FB}, {7*1024}")
        A(f"s_add_u32 s60, s60, s61")
        A(f"s_add_u32 s60, s60, {WS_Z2N + (ell-2)*56*1024}")
        A(f"s_mul_i32 s61, s68, {2*56*1024}")
        A(f"s_add_u32 s60, s60, s61")
        A(f"s_mov_b32 s70, {2*56*1024}")
        A(f"s_add_u32 s61, s60, 4096")
        npc = 7
    A("s_waitcnt lgkmcnt(0)")
    if ell < 2: srd(A, SRD_WSP, P_WSP, 2048 * 4096)
    srd(A, SRD_WS, P_WS, WS_BYTES)
    def issue():
        if 'nodma' in EXP: return
        if ell < 2:
            for m in range(4):
                for par in range(2):
                    A(f"s_add_u32 m0, s64, {(2*(4*ell+m)+par)*1024}")
                    A(f"buffer_load_dwordx4 v{13+par}, {s(SRD_WSP,4)}, s{60+m} offen lds")
            A(f"s_add_u32 s68, s68, 1")
            A(f"s_and_b32 s68, s68, 15")
            A(f"s_cselect_b32 s69, s70, {128-2048}")
            for m in range(4): A(f"s_add_u32 s{60+m}, s{60+m}, s69")
        else:
            for u in range(7):
                if u % 4 == 0: A(f"s_add_u32 m0, s64, {16384 + ((ell-2)*7+u)*1024}")
                A(f"buffer_load_dwordx4 v13, {s(SRD_WS,4)}, s{60 + (u>>2)} offen offset:{(u&3)*1024} lds")
            A(f"s_add_u32 s68, s68, 1")
            A(f"s_and_b32 s68, s68, 15")
            A(f"s_cselect_b32 s69, s70, {(2-32)*56*1024}")
            for m in range(2): A(f"s_add_u32 s{60+m}, s{60+m}, s69")
        A(f"s_add_u32 s64, s64, {SLOT}")
        A(f"s_cmp_eq_u32 s64, {SLOT*NSLOT}")
        A(f"s_cselect_b32 s64, 0, s64")
    A("s_mov_b32 s64, 0")
    stamp(A, 1)
    issue(); issue()
    A(f"s_waitcnt vmcnt({npc})")
    stamp(A, 2)
    A("s_barrier")
    issue()
    A(f"s_mov_b32 s65, {NST-3}")
    A.label(f"{P}_loop")
    issue()
    A(f"s_waitcnt vmcnt({2*npc})")
    A("s_barrier")
    A("s_sub_u32 s65, s65, 1")
    A("s_cmp_lg_u32 s65, 0")
    A(f"s_cbranch_scc1 {P}_loop")
    A(f"s_waitcnt vmcnt({npc})")
    A("s_barrier")
    A("s_waitcnt vmcnt(0)")
    A("s_barrier")
    if 'nobar' not in EXP: A("s_barrier")
    stamp(A, 3)

ACC, ZR, WB = 128, 64, 96
VZ, VW0, VW1, VW2, VW3 = 2, 3, 4, 5, 6
def acc(u, T): return ACC + 4 * (2 * u + T)

def compute(A, P, opt):
    stf = opt.get("stflags", "")
    A("s_waitcnt lgkmcnt(0)")
    srd(A, SRD_WS, P_WS, WS_BYTES)
    srd(A, SRD_BSP, P_BSP, 4096)
    Z1 = 8
    A(f"s_lshl_b32 s60, s{S_TB}, 3")
    A(f"s_lshl_b32 s61, s{S_W}, 1")
    A(f"s_add_u32 s60, s60, s61")
    A(f"s_mov_b32 s66, s60")
    A(f"s_mul_i32 s61, s60, {56*512}")
    A(f"s_mul_i32 s62, s{S_FB}, {7*512}")
    A(f"s_add_u32 s61, s61, s62")
    A(f"s_add_u32 s61, s61, {WS_Z1}")
    A(f"s_add_u32 s62, s61, {56*512}")
    A("v_lshlrev_b32 v38, 3, v0")
    for T in range(2):
        for u in range(7):
            A(f"buffer_load_dwordx2 {v(Z1 + 2*(2*u+T), 2)}, v38, {s(SRD_WS,4)}, s{61+T} offen offset:{512*u}")
    A("v_and_b32 v39, 15, v0")
    A("v_lshlrev_b32 v39, 1, v39")
    A(f"s_lshl_b32 s63, s60, 5")
    A(f"buffer_load_ushort v36, v39, {s(SRD_BSP,4)}, s63 offen")
    A(f"buffer_load_ushort v37, v39, {s(SRD_BSP,4)}, s63 offen offset:32")
    A("v_lshlrev_b32 v2, 4, v0")
    A(f"v_add_u32 v{VZ}, 16384, v2")
    A("v_and_b32 v40, 15, v0")
    A("v_lshrrev_b32 v41, 4, v0")
    A("v_lshrrev_b32 v42, 1, v41")
    A("v_lshrrev_b32 v43, 1, v40")
    A("v_xor_b32 v42, v42, v43")
    A("v_lshlrev_b32 v42, 4, v42")
    A("v_and_b32 v41, 1, v41")
    A("v_lshl_add_u32 v42, v41, 3, v42")
    A("v_lshl_add_u32 v42, v40, 7, v42")
    A(f"s_lshl_b32 s63, s{S_W}, 12")
    A(f"v_add_u32 v{VW0}, s63, v42")
    A(f"v_xor_b32 v{VW1}, 32, v{VW0}")
    A(f"v_xor_b32 v{VW2}, 64, v{VW0}")
    A(f"v_xor_b32 v{VW3}, 96, v{VW0}")
    A("s_waitcnt vmcnt(0)")
    A(f"s_cmp_eq_u32 s{S_KH}, 0")
    A(f"s_cselect_b32 s63, -1, 0")
    for T in range(2):
        A(f"v_lshlrev_b32 v{36+T}, 16, v{36+T}")
        A(f"v_and_b32 v{36+T}, s63, v{36+T}")
    for u in range(7):
        for T in range(2):
            for r in range(4): A(f"v_mov_b32 v{acc(u,T)+r}, v{36+T}")
    L = Lgkm(A)
    def rd_wb(kk):
        if 'nords' in EXP:
            for i in range(4): L.issue(("w", kk))
            return
        for T in range(2):
            r = WB + 8 * kk + 4 * T
            A(f"ds_read_b64 {v(r,2)}, v{VW2 if kk else VW0} offset:{2048*T}"); L.issue(("w", kk))
            A(f"ds_read_b64 {v(r+2,2)}, v{VW3 if kk else VW1} offset:{2048*T}"); L.issue(("w", kk))
    def wb_reads(kk):
        out = []
        for T in range(2):
            r = WB + 8 * kk + 4 * T
            out.append(lambda r=r, T=T: (A(f"ds_read_b64 {v(r,2)}, v{VW2 if kk else VW0} offset:{2048*T}"), L.issue(("w", kk))))
            out.append(lambda r=r, T=T: (A(f"ds_read_b64 {v(r+2,2)}, v{VW3 if kk else VW1} offset:{2048*T}"), L.issue(("w", kk))))
        return out
    def rd_z(kk, u):
        if 'nords' in EXP:
            A("s_nop 0"); L.issue(("z", u)); return
        A(f"ds_read_b128 {v(ZR+4*u,4)}, v{VZ} offset:{(7*kk+u)*1024}"); L.issue(("z", u))
    def advance():
        A(f"s_add_u32 s64, s64, {SLOT}")
        A(f"s_cmp_eq_u32 s64, {SLOT*NSLOT}")
        A(f"s_cselect_b32 s63, {-SLOT*(NSLOT-1)}, s67")
        A(f"s_cselect_b32 s64, 0, s64")
        for r in (VW0, VW1, VZ): A(f"v_add_u32 v{r}, s63, v{r}")
    def advance2():
        for r in (VW2, VW3): A(f"v_add_u32 v{r}, s63, v{r}")
    A(f"s_mov_b32 s67, {SLOT}")
    A("s_mov_b32 s64, 0")
    stamp(A, 1)
    A("s_barrier")
    stamp(A, 2)
    wi = wb_reads(0)
    rd_z(0, 0); wi[0](); wi[1](); rd_z(0, 1); wi[2](); wi[3]()
    for u in range(2, 7): rd_z(0, u)
    start = list(L.p)
    A(f"s_mov_b32 s65, {NST-1}")
    A.label(f"{P}_loop")
    I = lambda txt: (lambda: A(txt))
    free = {}
    w1 = wb_reads(1); w0 = wb_reads(0)
    free[(0, 2)] = [I(f"s_add_u32 s64, s64, {SLOT}"), I(f"s_cmp_eq_u32 s64, {SLOT*NSLOT}")]
    free[(0, 3)] = [I(f"s_cselect_b32 s63, {-SLOT*(NSLOT-1)}, s67"), I(f"s_cselect_b32 s64, 0, s64")]
    free[(0, 0)] = w1[0:2]; free[(0, 1)] = w1[2:4]
    free[(0, 4)] = [I(f"v_add_u32 v{VW0}, s63, v{VW0}"), I(f"v_add_u32 v{VW1}, s63, v{VW1}")]
    free[(0, 5)] = [I(f"v_add_u32 v{VW2}, s63, v{VW2}"), I(f"v_add_u32 v{VW3}, s63, v{VW3}")]
    free[(1, 0)] = [I("s_barrier") if 'nobar' not in EXP else I("s_nop 0"), I(f"v_add_u32 v{VZ}, s63, v{VZ}")]
    free[(1, 1)] = w0[0:2]; free[(1, 2)] = w0[2:4]
    free[(1, 5)] = [I("s_sub_u32 s65, s65, 1")]
    for kk in range(2):
        for u in range(7):
            if u == 0: L.wait(("w", kk))
            L.wait(("z", u))
            mfma(A, acc(u, 0), ZR + 4 * u, WB + 8 * kk, acc(u, 0))
            for f in free.get((kk, u), []): f()
            mfma(A, acc(u, 1), ZR + 4 * u, WB + 8 * kk + 4, acc(u, 1))
            rd_z(1 - kk, u)
    A(f"s_cbranch_scc0 {P}_loop")
    end = list(L.p)
    assert start == end, (start, end)
    L.wait_all()
    stamp(A, 3)
    A(f"s_mul_i32 s60, s{S_KH}, {128*8*3584}")
    A(f"s_mul_i32 s61, s66, {8*3584}")
    A(f"s_add_u32 s60, s60, s61")
    A(f"s_mul_i32 s61, s{S_FB}, 3584")
    A(f"s_add_u32 s60, s60, s61")
    A(f"s_add_u32 s60, s60, {WS_U}")
    A(f"s_add_u32 s61, s60, {8*3584}")
    A("v_lshlrev_b32 v39, 4, v0")
    TM = [64 + 4 * i for i in range(8)]
    n = 0
    for T in range(2):
        for u in range(7):
            z = Z1 + 2 * (2 * u + T); t = TM[n % 8]; n += 1; a_ = acc(u, T)
            A(f"v_lshlrev_b32 v{t}, 16, v{z}")
            A(f"v_and_b32 v{t+1}, 0xffff0000, v{z}")
            A(f"v_lshlrev_b32 v{t+2}, 16, v{z+1}")
            A(f"v_and_b32 v{t+3}, 0xffff0000, v{z+1}")
            pk(A, "mul", a_, ('p', a_), ('p', t))
            pk(A, "mul", a_ + 2, ('p', a_ + 2), ('p', t + 2))
            d = 100 + 16 * T + 2 * u
            A(f"v_cvt_pk_bf16_f32 v{d}, v{a_}, v{a_+1}")
            A(f"v_cvt_pk_bf16_f32 v{d+1}, v{a_+2}, v{a_+3}")
            if u & 1:
                A(f"buffer_store_dwordx4 {v(d-2,4)}, v39, {s(SRD_WS,4)}, s{60+T} offen offset:{1024*(u>>1)}{stf}")
            if u == 6:
                A(f"buffer_store_dwordx2 {v(d,2)}, v38, {s(SRD_WS,4)}, s{60+T} offen offset:3072{stf}")
    stamp(A, 4)
    if STAMP["on"]:
        A("s_waitcnt vmcnt(0)")
        stamp(A, 5)

def gen_k2(opt, kidx=0):
    A = Asm()
    prologue(A, "k2_end")
    stamp_init(A)
    wg_map_p2(A, 60)
    A(f"s_cmp_ge_u32 s{S_W}, 4")
    A("s_cbranch_scc1 k2_load")
    compute(A, "k2c", opt)
    stamp_flush(A, SRD_WS, S_W, kidx)
    A("s_endpgm")
    A.label("k2_load")
    for ell in range(4):
        if ell < 3:
            A(f"s_cmp_lg_u32 s{S_W}, {4+ell}")
            A(f"s_cbranch_scc1 k2_l{ell+1}")
        loader(A, ell, f"k2l{ell}")
        stamp_flush(A, SRD_WS, S_W, kidx)
        A("s_endpgm")
        if ell < 3: A.label(f"k2_l{ell+1}")
    A.label("k2_end")
    A("s_endpgm")
    return ("k2_kernel", A.text(), 256, 512, K2_LDS, 256)
```

```python
from gl import *

SLOT3, NS3 = 16384, 9
K3_LDS = SLOT3 * NS3
NST3 = 11
S_W, S_TB, S_DB = 3, 52, 53
SRD_WO, SRD_WOUT, SRD_WS, SRD_X, SRD_OUT = 32, 36, 44, 40, 48
EXP = ''

class Vm:
    def __init__(self, A): self.A = A; self.p = []
    def issue(self, tag): self.p.append(tag); assert len(self.p) <= 63
    def wait(self, tag):
        idx = [i for i, t in enumerate(self.p) if t == tag]
        if not idx: return
        idx = idx[-1]
        self.A(f"s_waitcnt vmcnt({len(self.p) - 1 - idx})")
        self.p = self.p[idx + 1:]

def ksteps(h):
    return [('o', 2 * n + h) for n in range(8)] + [('u', 2 * m + h, p) for m in range(4) for p in range(3)] + [('s', 2 * h), ('s', 2 * h + 1)]

def src_rows(ks):
    if ks[0] == 'o': return 'wo', [28 * ks[1] + 8 * q for q in range(4)]
    if ks[0] == 'u': return 'wout', [112 * ks[1] + 32 * ks[2] + 8 * q for q in range(4)]
    m = ks[1]
    return 'wout', [112 * 2 * m + 96, 112 * 2 * m + 104, 112 * (2 * m + 1) + 96, 112 * (2 * m + 1) + 104]

def wg_map_p3(A, t0):
    A(f"s_and_b32 s{S_TB}, s2, 7")
    A(f"s_lshl_b32 s{S_TB}, s{S_TB}, 2")
    A(f"s_bfe_u32 s{t0}, s2, 0x20003")
    A(f"s_add_u32 s{S_TB}, s{S_TB}, s{t0}")
    A(f"s_lshr_b32 s{S_DB}, s2, 5")

def loader(A, ell):
    h, kk = ell >> 1, ell & 1
    K = ksteps(h)
    A("v_lshrrev_b32 v8, 3, v0")
    A("v_mul_u32_u24 v8, 896, v8")
    A("v_bfe_u32 v9, v0, 1, 2")
    A("v_lshrrev_b32 v10, 4, v0")
    A("v_xor_b32 v9, v9, v10")
    A("v_lshl_add_u32 v8, v9, 5, v8")
    A("v_and_b32 v9, 1, v0")
    A("v_lshl_add_u32 v8, v9, 4, v8")
    A(f"s_lshl_b32 s60, s{S_DB}, 7")
    A("v_add_u32 v8, s60, v8")
    A("s_waitcnt lgkmcnt(0)")
    srd(A, SRD_WO, P_WO, 448 * 896)
    srd(A, SRD_WOUT, P_WOUT, 896 * 896)
    def issue(S):
        mat, rows = src_rows(K[2 * S + kk])
        for q in range(4):
            A(f"s_mov_b32 m0, {(S % NS3) * SLOT3 + ell * 4096 + q * 1024}")
            A(f"s_mov_b32 s61, {rows[q] * 896}")
            A(f"buffer_load_dwordx4 v8, {s(SRD_WO if mat == 'wo' else SRD_WOUT, 4)}, s61 offen lds")
    stamp(A, 1)
    for S in range(NS3): issue(S)
    issued = NS3
    for n in range(NST3):
        A(f"s_waitcnt vmcnt({4 * (issued - 1 - n)})")
        if n == 0: stamp(A, 2)
        A("s_barrier")
        if n >= 2 and issued < NST3:
            issue(issued); issued += 1
    stamp(A, 3)

ACC, AF, BR, NBF = 200, 160, 24, 32
VA = [2, 3, 4, 5]
def acc(dt, T): return ACC + 4 * (2 * dt + T)

def compute_half(A, h, P):
    K = ksteps(h)
    Vmc = Vm(A); L = Lgkm(A)
    frs = []
    for j, ks in enumerate(K):
        for kh in (range(1) if ks[0] == 'o' else range(2)):
            for T in range(2): frs.append((j, T, kh))
    reg = {f: BR + 4 * (n % NBF) for n, f in enumerate(frs)}
    def load_b(n):
        j, T, kh = frs[n]; ks = K[j]; r = reg[frs[n]]
        if ks[0] == 'o':
            A(f"s_add_u32 s72, s{60+T}, {ks[1]*1024}")
            A(f"buffer_load_dwordx4 {v(r,4)}, v6, {s(SRD_WS,4)}, s72 offen"); Vmc.issue(n)
        elif ks[0] == 'u':
            A(f"s_add_u32 s72, s{62+2*kh+T}, {ks[1]*3584}")
            A(f"buffer_load_dwordx4 {v(r,4)}, v6, {s(SRD_WS,4)}, s72 offen offset:{ks[2]*1024}"); Vmc.issue(n)
        else:
            m = ks[1]
            A(f"s_add_u32 s72, s{62+2*kh+T}, {2*m*3584}")
            A(f"buffer_load_dwordx2 {v(r,2)}, v7, {s(SRD_WS,4)}, s72 offen offset:3072"); Vmc.issue(n)
            A(f"s_add_u32 s72, s72, 3584")
            A(f"buffer_load_dwordx2 {v(r+2,2)}, v7, {s(SRD_WS,4)}, s72 offen offset:3072"); Vmc.issue(n)
    nb = 0
    while nb < NBF: load_b(nb); nb += 1
    def rd_a(j):
        S, kk = divmod(j, 2)
        base = (S % NS3) * SLOT3 + (2 * h + kk) * 4096
        hi = base >= 65536 - 4096
        out = []
        for dt in range(4):
            for b in range(2):
                r = AF + 16 * (j & 1) + 4 * dt + 2 * b
                off = base + 2048 * b
                vr = VA[dt] + 8 * (off // 61440)
                off -= 61440 * (off // 61440)
                out.append(lambda r=r, vr=vr, off=off, j=j: (A(f"ds_read_b64_tr_b16 {v(r,2)}, v{vr} offset:{off}"), L.issue(("a", j))))
        return out
    for dt in range(4):
        for T in range(2):
            for r in range(4): A(f"v_mov_b32 v{acc(dt,T)+r}, 0")
    stamp(A, 1)
    A("s_barrier")
    stamp(A, 2)
    for f in rd_a(0): f()
    nk = len(K)
    cons = 0
    for j, ks in enumerate(K):
        S, kk = divmod(j, 2)
        nkh = 1 if ks[0] == 'o' else 2
        myf = [n for n, f in enumerate(frs) if f[0] == j]
        fill = []
        if j + 1 < nk:
            if kk == 1: fill.append(lambda: A("s_barrier"))
            fill += rd_a(j + 1)
        Vmc.wait(myf[-1])
        L.wait(("a", j))
        seq = [(dt, kh, T) for dt in range(4) for kh in range(nkh) for T in range(2)]
        per = -(-len(fill) // len(seq))
        for (dt, kh, T) in seq:
            mfma(A, acc(dt, T), AF + 16 * (j & 1) + 4 * dt, reg[(j, T, kh)], acc(dt, T))
            for _ in range(per):
                if fill: fill.pop(0)()
        assert not fill
        cons = myf[-1] + 1
        while nb < len(frs) and nb < cons + NBF:
            load_b(nb); nb += 1
    stamp(A, 3)

def compute(A, P):
    A("s_waitcnt lgkmcnt(0)")
    srd(A, SRD_WS, P_WS, WS_BYTES)
    A(f"s_lshl_b32 s70, s{S_TB}, 2")
    A(f"s_and_b32 s71, s{S_W}, 1")
    A(f"s_lshl_b32 s71, s71, 1")
    A(f"s_add_u32 s70, s70, s71")
    A(f"s_lshl_b32 s60, s70, 14")
    A(f"s_add_u32 s60, s60, {WS_O}")
    A(f"s_add_u32 s61, s60, 16384")
    A(f"s_mul_i32 s62, s70, 28672")
    A(f"s_add_u32 s62, s62, {WS_U}")
    A(f"s_add_u32 s63, s62, 28672")
    A(f"s_add_u32 s64, s62, {128*28672}")
    A(f"s_add_u32 s65, s63, {128*28672}")
    A("v_lshlrev_b32 v6, 4, v0")
    A("v_lshlrev_b32 v7, 3, v0")
    A("v_and_b32 v20, 15, v0")
    A("v_lshrrev_b32 v21, 4, v0")
    A("v_lshrrev_b32 v22, 2, v20")
    A("v_lshl_add_u32 v22, v21, 2, v22")
    A("v_lshlrev_b32 v22, 7, v22")
    A("v_and_b32 v23, 3, v20")
    A("v_lshl_add_u32 v22, v23, 3, v22")
    A("v_and_b32 v21, 1, v21")
    A("v_lshlrev_b32 v21, 1, v21")
    A("v_lshrrev_b32 v23, 3, v20")
    A("v_add_u32 v21, v21, v23")
    for dt in range(4):
        A(f"v_xor_b32 v23, {dt}, v21")
        A(f"v_lshl_add_u32 v{VA[dt]}, v23, 5, v22")
        A(f"v_add_u32 v{VA[dt]+8}, 61440, v{VA[dt]}")
        A(f"v_add_u32 v{VA[dt]+16}, 122880, v{VA[dt]}")
    A(f"s_cmp_ge_u32 s{S_W}, 2")
    A(f"s_cbranch_scc1 {P}_h1")
    compute_half(A, 0, P)
    A(f"s_branch {P}_tail")
    A.label(f"{P}_h1")
    compute_half(A, 1, P)
    A.label(f"{P}_tail")

RP = 272
def tail_write(A):
    A("s_barrier")
    A("v_and_b32 v20, 15, v0")
    A("v_lshrrev_b32 v21, 4, v0")
    A(f"v_mul_u32_u24 v20, {RP}, v20")
    A("v_lshl_add_u32 v20, v21, 4, v20")
    A(f"s_and_b32 s70, s{S_W}, 1")
    A(f"s_mul_i32 s70, s70, {32*RP}")
    A(f"s_lshr_b32 s71, s{S_W}, 1")
    A(f"s_mul_i32 s71, s71, {64*RP}")
    A("s_add_u32 s70, s70, s71")
    A("v_add_u32 v20, s70, v20")
    for T in range(2):
        for dt in range(4):
            A(f"ds_write_b128 v20, {v(acc(dt,T),4)} offset:{T*16*RP + dt*64}")
    A("s_waitcnt lgkmcnt(0)")
    A("s_barrier")

def tail_x(A):
    srd(A, SRD_X, P_X, 2048 * 896)
    srd(A, SRD_OUT, P_OUT, 2048 * 896)
    A("v_lshrrev_b32 v12, 3, v0")
    A(f"s_lshl_b32 s74, s{S_W}, 3")
    A("v_add_u32 v12, s74, v12")
    A("v_and_b32 v13, 7, v0")
    A("v_mul_u32_u24 v14, 896, v12")
    A("v_lshl_add_u32 v14, v13, 4, v14")
    A(f"s_mul_i32 s74, s{S_TB}, {64*896}")
    A(f"s_lshl_b32 s75, s{S_DB}, 7")
    A("s_add_u32 s74, s74, s75")
    A(f"buffer_load_dwordx4 v[16:19], v14, {s(SRD_X,4)}, s74 offen")
    A(f"v_mul_u32_u24 v12, {RP}, v12")
    A("v_lshl_add_u32 v12, v13, 5, v12")

def tail_out(A):
    A(f"ds_read_b128 v[232:235], v12")
    A(f"ds_read_b128 v[236:239], v12 offset:16")
    A(f"ds_read_b128 v[240:243], v12 offset:{64*RP}")
    A(f"ds_read_b128 v[244:247], v12 offset:{64*RP+16}")
    A("s_waitcnt vmcnt(0)")
    for k in range(4):
        A(f"v_lshlrev_b32 v{224+2*k}, 16, v{16+k}")
        A(f"v_and_b32 v{225+2*k}, 0xffff0000, v{16+k}")
    A("s_waitcnt lgkmcnt(0)")
    for k in range(4):
        pk(A, "add", 232 + 2 * k, ('p', 232 + 2 * k), ('p', 240 + 2 * k))
    for k in range(4):
        pk(A, "add", 232 + 2 * k, ('p', 232 + 2 * k), ('p', 224 + 2 * k))
    for k in range(4):
        A(f"v_cvt_pk_bf16_f32 v{232+k}, v{232+2*k}, v{233+2*k}")
    A(f"buffer_store_dwordx4 v[232:235], v14, {s(SRD_OUT,4)}, s74 offen")

def gen_k3(opt, kidx=0):
    A = Asm()
    prologue(A, "k3_end", nwg=224)
    stamp_init(A)
    wg_map_p3(A, 60)
    A(f"s_cmp_ge_u32 s{S_W}, 4")
    A("s_cbranch_scc1 k3_load")
    compute(A, "k3c")
    tail_x(A)
    tail_write(A)
    tail_out(A)
    stamp(A, 4)
    stamp_flush(A, SRD_WS, S_W, kidx)
    A("s_endpgm")
    A.label("k3_load")
    for ell in range(4):
        if ell < 3:
            A(f"s_cmp_lg_u32 s{S_W}, {4+ell}")
            A(f"s_cbranch_scc1 k3_l{ell+1}")
        loader(A, ell)
        A("s_branch k3_ltail")
        if ell < 3: A.label(f"k3_l{ell+1}")
    A.label("k3_ltail")
    srd(A, SRD_WS, P_WS, WS_BYTES)
    tail_x(A)
    A("s_barrier"); A("s_barrier")
    tail_out(A)
    stamp_flush(A, SRD_WS, S_W, kidx)
    A.label("k3_end")
    A("s_endpgm")
    return ("k3_kernel", A.text(), 224, 512, K3_LDS, 256)
```

```python
from asmlib import *
from lay import *
import math

LOG2E = 1.4426950408889634
def f2u(x):
    import struct
    return struct.unpack("<I", struct.pack("<f", x))[0]
def fhex(x): return hex(f2u(x))

class Lgkm:
    def __init__(self, A):
        self.A = A; self.p = []
    def issue(self, tag):
        self.p.append(tag); assert len(self.p) <= 15, ("lgkm overflow", self.p)
    def wait(self, tag):
        idx = [i for i, t in enumerate(self.p) if t == tag]
        if not idx: return
        idx = idx[-1]
        n = len(self.p) - 1 - idx
        self.A(f"s_waitcnt lgkmcnt({n})")
        self.p = self.p[idx + 1:]
    def wait_all(self):
        self.A("s_waitcnt lgkmcnt(0)"); self.p = []

def pk(A, op, dst, *srcs, neg=None):
    ops = []; sel = []; selhi = []
    for k, r in srcs:
        if k == 'p':
            assert r % 2 == 0, r
            ops.append(v(r, 2)); sel.append(0); selhi.append(1)
        elif k == 'b':
            ops.append(v(r & ~1, 2)); sel.append(r & 1); selhi.append(r & 1)
        elif k == 's':
            assert r % 2 == 0
            ops.append(s(r, 2)); sel.append(0); selhi.append(1)
        elif k == 'sb':
            ops.append(s(r & ~1, 2)); sel.append(r & 1); selhi.append(r & 1)
    assert dst % 2 == 0
    t = f"v_pk_{op}_f32 {v(dst,2)}, " + ", ".join(ops)
    if any(sel): t += " op_sel:[" + ",".join(map(str, sel)) + "]"
    if not all(selhi): t += " op_sel_hi:[" + ",".join(map(str, selhi)) + "]"
    if neg and any(neg):
        t += " neg_lo:[" + ",".join(map(str, neg)) + "] neg_hi:[" + ",".join(map(str, neg)) + "]"
    A(t)

def mfma(A, d, a_, b_, c):
    cs = "0" if c is None else v(c, 4)
    A(f"v_mfma_f32_16x16x32_bf16 {v(d,4)}, {v(a_,4)}, {v(b_,4)}, {cs}")

def magic_div(d, nmax, shift=16):
    m = ((1 << shift) + d - 1) // d
    for n in range(nmax):
        assert (n * m) >> shift == n // d, (d, n)
    assert nmax * m < (1 << 32)
    return m

def allreduce_rows(A, op, regs, tmp):
    for r, t in zip(regs, tmp): A(f"v_mov_b32 v{t}, v{r}")
    for r, t in zip(regs, tmp): A(f"v_permlane16_swap_b32 v{r}, v{t}")
    for r, t in zip(regs, tmp): A(f"v_{op}_f32 v{r}, v{r}, v{t}")
    for r, t in zip(regs, tmp): A(f"v_mov_b32 v{t}, v{r}")
    for r, t in zip(regs, tmp): A(f"v_permlane32_swap_b32 v{r}, v{t}")
    for r, t in zip(regs, tmp): A(f"v_{op}_f32 v{r}, v{r}, v{t}")

def dpp_row_allreduce(A, regs, steps=(8, 4, 2, 1)):
    for st in steps:
        for r in regs:
            A(f"v_add_f32_dpp v{r}, v{r}, v{r} row_ror:{st} row_mask:0xf bank_mask:0xf")

def prologue(A, end, nwg=256):
    A(f"s_cmp_ge_u32 s2, {nwg}")
    A(f"s_cbranch_scc1 {end}")
    A("s_load_dwordx16 s[8:23], s[0:1], 0")
    A("s_load_dwordx4 s[24:27], s[0:1], 64")
    A("s_load_dwordx2 s[28:29], s[0:1], 80")
    A("v_lshrrev_b32 v1, 6, v0")
    A("v_and_b32 v0, 63, v0")
    A("v_readfirstlane_b32 s3, v1")

P_X, P_WQKV, P_WO, P_WIN, P_WSP, P_BSP, P_WOUT, P_OUT, P_DBG, P_WS = 8, 10, 12, 16, 18, 20, 22, 24, 26, 28
WS_BYTES = 0x1600000

def finish(kernels, path, note=""):
    import hazard
    txt = note
    for (name, body, grid, block, lds, vg) in kernels:
        txt += f"; @launch kernel={name} grid=({grid},1,1) block=({block},1,1) lds={lds}\n"
    txt += '.amdgcn_target "amdgcn-amd-amdhsa--gfx950"\n.text\n'
    for (name, body, grid, block, lds, vg) in kernels:
        txt += kernel_header(name) + hazard.fix(body, True) + "\n"
    txt += '.section .rodata,"a"\n'
    for (name, body, grid, block, lds, vg) in kernels:
        txt += kernel_desc(name, vg)
    open(path, "w").write(txt)
    return txt

def csel(A, dst, a_, b_):
    A(f"s_mov_b32 s{dst}, {b_}")
    A(f"s_cselect_b32 s{dst}, {a_}, s{dst}")

STAMP = {"on": False}
def stamp(A, idx, wait=True, sreg=96):
    if not STAMP["on"]: return
    A(f"s_memtime s[{sreg}:{sreg+1}]")
    if wait:
        A("s_waitcnt lgkmcnt(0)")
        A(f"v_writelane_b32 v250, s{sreg}, {idx}")
def stamp_commit(A, idx, sreg=96):
    if STAMP["on"]: A(f"v_writelane_b32 v250, s{sreg}, {idx}")
def stamp_init(A):
    if not STAMP["on"]: return
    A("v_mov_b32 v250, 0")
    A("s_memrealtime s[98:99]")
    A("s_memtime s[96:97]")
    A("s_waitcnt lgkmcnt(0)")
    A("v_writelane_b32 v250, s98, 63")
    A("v_writelane_b32 v250, s96, 0")
def stamp_flush(A, srd_ws, s_wave, kidx=0):
    if not STAMP["on"]: return
    A("s_memrealtime s[98:99]")
    A("s_waitcnt lgkmcnt(0)")
    A("v_writelane_b32 v250, s98, 62")
    A(f"s_lshl_b32 s96, s2, 3")
    A(f"s_add_u32 s96, s96, s{s_wave}")
    A(f"s_lshl_b32 s96, s96, 8")
    A(f"s_add_u32 s96, s96, {WS_DBG + kidx*0x80000}")
    A("v_lshlrev_b32 v251, 2, v0")
    A(f"buffer_store_dword v250, v251, {s(srd_ws,4)}, s96 offen")
```

```python
import re

TRANS = ("v_exp_f32", "v_log_f32", "v_rcp_f32", "v_rsq_f32", "v_sqrt_f32", "v_sin_f32", "v_cos_f32",
         "v_rcp_iflag_f32", "v_exp_f16", "v_rcp_f16")

def regs_of(tok):
    tok = tok.strip()
    neg = tok.lstrip("-|").rstrip("|")
    tok = neg
    m = re.fullmatch(r"([vsa])(\d+)", tok)
    if m: return {(m.group(1), int(m.group(2)))}
    m = re.fullmatch(r"([vsa])\[(\d+):(\d+)\]", tok)
    if m: return {(m.group(1), i) for i in range(int(m.group(2)), int(m.group(3)) + 1)}
    if tok == "vcc": return {("vcc", 0), ("vcc", 1)}
    if tok == "vcc_lo": return {("vcc", 0)}
    if tok == "vcc_hi": return {("vcc", 1)}
    if tok == "exec": return {("exec", 0), ("exec", 1)}
    if tok in ("exec_lo",): return {("exec", 0)}
    if tok in ("exec_hi",): return {("exec", 1)}
    if tok == "m0": return {("m0", 0)}
    return set()

class I:
    pass

def parse(line):
    s = line.split(";")[0].strip()
    it = I(); it.text = line; it.op = None
    it.w = set(); it.r = set(); it.kind = "other"; it.states = 1
    if not s or s.endswith(":") or s.startswith("."):
        it.kind = "label" if s.endswith(":") else "none"; it.states = 0
        return it
    parts = s.split(None, 1)
    op = parts[0]; it.op = op
    rest = parts[1] if len(parts) > 1 else ""
    ops = [x.strip() for x in re.split(r",(?![^\[]*\])", rest)] if rest else []
    mods = ""
    if ops:
        last = ops[-1].split(None, 1)
        if len(last) > 1:
            ops[-1] = last[0]; mods = last[1]
        elif not regs_of(last[0]) and re.match(r"^(offen|offset|lds|sc0|sc1|nt|row_|quad_perm|op_sel|neg_|off$)", last[0]) and op.startswith(("buffer", "ds_", "global")):
            mods = last[0]
    it.ops = ops; it.mods = mods
    R = [regs_of(o) for o in ops]
    base = re.sub(r"_(e32|e64|dpp|sdwa)$", "", op)
    it.base = base
    it.dpp = ("row_" in mods) or ("quad_perm" in mods) or op.endswith("_dpp") or ("wave_" in mods)
    if op == "s_nop":
        it.kind = "nop"; it.states = int(ops[0], 0) + 1
    elif base.startswith("v_mfma"):
        it.kind = "mfma"; it.w = R[0]; it.a = R[1]; it.b = R[2]; it.c = R[3] if len(R) > 3 else set()
        it.r = it.a | it.b | it.c
        it.passes = 8 if "32x32" in base else 4
    elif base.startswith("v_"):
        it.kind = "valu"
        it.trans = base in TRANS
        it.dot = base.startswith("v_dot")
        if base.startswith("v_cmp"):
            it.w = R[0]; it.r = set().union(*R[1:]) if len(R) > 1 else set()
        elif base.startswith("v_permlane") and "swap" in base:
            it.w = R[0] | R[1]; it.r = R[0] | R[1]
        elif base in ("v_add_co_u32", "v_sub_co_u32", "v_subrev_co_u32"):
            it.w = R[0] | R[1]; it.r = set().union(*R[2:])
        elif base in ("v_addc_co_u32", "v_subb_co_u32"):
            it.w = R[0] | R[1]; it.r = set().union(*R[2:])
        else:
            it.w = R[0]; it.r = set().union(*R[1:]) if len(R) > 1 else set()
            if base in ("v_fmac_f32", "v_dot2c_f32_bf16", "v_pk_fmac_f16", "v_mac_f32", "v_writelane_b32"):
                it.r |= R[0]
            if base == "v_cndmask_b32" and len(ops) == 3:
                it.r |= {("vcc", 0), ("vcc", 1)}
            if it.dpp:
                it.r |= R[0]
    elif base.startswith("s_"):
        it.kind = "salu"
        if base.startswith(("s_cmp", "s_cbranch", "s_branch", "s_waitcnt", "s_barrier", "s_endpgm", "s_setprio", "s_sleep", "s_bitcmp")):
            it.r = set().union(*R) if R else set()
        elif base.startswith(("s_load", "s_buffer_load", "s_memtime", "s_memrealtime")):
            it.kind = "smem"; it.w = R[0]; it.r = set().union(*R[1:]) if len(R) > 1 else set()
        else:
            it.w = R[0] if R else set(); it.r = set().union(*R[1:]) if len(R) > 1 else set()
            if "saveexec" in base: it.w |= {("exec", 0), ("exec", 1)}
    elif base.startswith(("buffer_", "global_", "flat_")):
        it.kind = "vmem"
        it.lds = bool(re.search(r"\blds\b", mods)) or "_lds_" in base
        isstore = "store" in base or ("atomic" in base)
        it.store = isstore
        if it.lds:
            it.r = set().union(*R)
        elif isstore:
            it.r = set().union(*R)
            it.data = R[0] if base.startswith("buffer_") else R[1]
            it.wide = base.endswith(("x3", "x4"))
        else:
            it.w = R[0]; it.r = set().union(*R[1:])
    elif base.startswith("ds_"):
        it.kind = "ds"
        if base.startswith(("ds_read", "ds_bpermute", "ds_permute", "ds_swizzle")):
            it.w = R[0]; it.r = set().union(*R[1:]) if len(R) > 1 else set()
        else:
            it.r = set().union(*R)
    return it

def isv(s): return {x for x in s if x[0] in ("v", "a")}
def iss(s): return {x for x in s if x[0] in ("s", "vcc")}

def need(prev, cur):
    n = 0
    k1, k2 = prev.kind, cur.kind
    if k1 == "valu":
        ws = iss(prev.w); wv = isv(prev.w)
        if ws:
            if k2 == "vmem" and (ws & cur.r): n = max(n, 5)
            if k2 == "valu" and (ws & cur.r):
                n = max(n, 4 if cur.base in ("v_readlane_b32", "v_writelane_b32") else 2)
        if wv:
            if k2 == "valu":
                if cur.dpp and (wv & cur.r): n = max(n, 2)
                if cur.base.startswith("v_permlane") and (wv & cur.r): n = max(n, 2)
                if cur.base in ("v_readfirstlane_b32", "v_readlane_b32") and (wv & cur.r): n = max(n, 1)
                if prev.trans and not cur.trans and (wv & cur.r): n = max(n, 1)
                if prev.dot and (wv & (cur.r | cur.w)):
                    if not (cur.base == prev.base and not (wv & set().union(*[regs_of(o) for o in cur.ops[1:3]]))):
                        n = max(n, 3)
            if k2 == "mfma" and (wv & cur.r): n = max(n, 3 if prev.dot else 2)
            if k2 in ("vmem", "ds") and prev.dot and (wv & cur.r): n = max(n, 3)
            if k2 in ("vmem", "ds") and prev.trans and (wv & cur.r): n = max(n, 1)
    if k1 == "salu" and ("m0", 0) in prev.w:
        if (k2 == "vmem" and cur.lds) or (k2 == "ds" and "addtid" in cur.base): n = max(n, 1)
    if k1 == "mfma":
        big = 8 if prev.passes == 4 else 12
        if k2 == "valu":
            if prev.w & (cur.r | cur.w): n = max(n, big)
            if prev.c & cur.w: n = max(n, 3 if prev.passes == 4 else 7)
        if k2 in ("vmem", "ds") and (prev.w & (cur.r | cur.w)): n = max(n, big)
        if k2 == "mfma":
            if prev.w & (cur.a | cur.b): n = max(n, big)
            if (prev.w & cur.c) and not (prev.w == cur.c and prev.passes == cur.passes):
                n = max(n, 6 if prev.passes == 4 else 10)
    if k1 == "vmem" and getattr(prev, "store", False) and getattr(prev, "wide", False):
        if k2 == "valu" and (prev.data & cur.w): n = max(n, 2)
        elif k2 in ("vmem", "ds") and (prev.data & cur.w): n = max(n, 1)
    return n

def fix(text, verbose=False):
    lines = text.split("\n")
    out = []
    nins = 0
    for ln in lines:
        it = parse(ln)
        if it.kind in ("none",):
            out.append(it); continue
        if it.kind == "label":
            out.append(it); continue
        dist = 0; req = 0
        for p in reversed(out):
            if p.kind in ("none", "label"): continue
            r = need(p, it) - dist
            if r > req: req = r
            dist += p.states
            if dist >= 13: break
        if req > 0:
            nins += 1
            while req > 0:
                k = min(req, 16)
                out.append(parse(f"    s_nop {k-1}"))
                req -= k
        out.append(it)
    if verbose: print(f"hazard: inserted {nins} nops")
    return "\n".join(i.text for i in out)

if __name__ == "__main__":
    t = """    v_lshrrev_b32 v1, 6, v0
    v_readfirstlane_b32 s38, v1
    v_mov_b32 v3, s38
    v_exp_f32 v4, v3
    v_add_f32 v5, 1.0, v4
    v_mfma_f32_16x16x32_bf16 v[8:11], v[4:7], v[12:15], 0
    v_add_f32 v20, v8, v9
    s_mov_b32 m0, s3
    buffer_load_dwordx4 v1, s[8:11], s4 offen lds
    v_add_f32 v21, v20, v20 row_ror:8
    v_dot2_f32_bf16 v30, v31, v32, v30
    v_dot2_f32_bf16 v30, v33, v32, v30
    v_add_f32 v34, v30, v30
    buffer_store_dwordx4 v[40:43], v1, s[8:11], 0 offen sc1
    v_mov_b32 v40, 0
"""
    print(fix(t, True))
```

```python
S, D, F, FH, H, DH = 2048, 448, 1792, 896, 16, 28
KA = dict(x=0, wqkv=8, wo=16, bx=24, w_in=32, w_sp=40, b_sp=48, w_out=56, out=64, dbg=72, ws=80)
WS_ST1 = 0x00000
WS_CS  = 0x08000
WS_ST2 = 0x30000
WS_Z2N = 0x100000
WS_Z1  = 0x500000
WS_O   = 0x900000
WS_U   = 0xC00000
WS_FLAG= 0x1400000
WS_FZ  = WS_FLAG
WS_FO  = WS_FLAG + 0x2000
WS_FU  = WS_FLAG + 0x4000
WS_DBG = 0x1500000
```

```python
from gl import *
import g_k2, g_k3, oldk1
finish([oldk1.old_k1(), g_k2.gen_k2({}), g_k3.gen_k3({})], "k123.s")
STAMP["on"] = True
finish([oldk1.old_k1(), g_k2.gen_k2({}, 1), g_k3.gen_k3({}, 0)], "k123_st.s")
```

```python
from gl import *

LX, LW = 0, 55296
XSA, XSB, WSA, WSB = 18432, 16384, 24576, 28672
LA1 = 153600; LB1 = LA1 + 576; LCS = 154752; LNON = 155648; LSC = 155712
F_LDS = 163840
POLL_MAX = 40000
S_W, S_I, S_C, S_G, S_PC, S_J, S_RG, S_LC, S_SL = 3, 52, 53, 54, 55, 56, 57, 58, 59
S_TAG = 60
T4 = (64, 65, 66, 67)
SRD_X, SRD_W, SRD_WS, SRD_DBG = 32, 36, 44, 48
BIG = 0x7ff00000

class LG(Lgkm):
    def issue(self, tag): self.p.append(tag)
    def wait(self, tag):
        idx = [i for i, t in enumerate(self.p) if t == tag]
        if not idx: return
        idx = idx[-1]
        n = min(len(self.p) - 1 - idx, 15)
        self.A(f"s_waitcnt lgkmcnt({n})")
        self.p = self.p[len(self.p) - n:] if n else []

def cvt2(A, d, lo, hi): A(f"v_cvt_pk_bf16_f32 v{d}, v{lo}, v{hi}")
def lane_mask(fn):
    m = 0
    for l in range(64):
        if fn(l >> 4, l & 15): m |= 1 << l
    return m
def smask(A, sr, m):
    A(f"s_mov_b32 s{sr}, {hex(m & 0xffffffff)}")
    A(f"s_mov_b32 s{sr+1}, {hex(m >> 32)}")

def wg_map(A):
    t0 = 64
    A(f"s_lshr_b32 s{t0}, s2, 3")
    A(f"s_and_b32 s{S_C}, s2, 3")
    A(f"s_lshl_b32 s{S_C}, s{S_C}, 1")
    A(f"s_and_b32 s{S_I}, s{t0}, 1")
    A(f"s_add_u32 s{S_G}, s{S_C}, s{S_I}")
    A(f"s_bfe_u32 s{S_I}, s{t0}, 0x10001")
    A(f"s_lshl_b32 s{S_I}, s{S_I}, 3")
    A(f"s_add_u32 s{S_C}, s{S_G}, s{S_I}")
    A(f"s_lshr_b32 s{t0}, s{t0}, 2")
    A(f"s_bfe_u32 s{S_I}, s2, 0x10002")
    A(f"s_lshl_b32 s{S_I}, s{S_I}, 3")
    A(f"s_add_u32 s{S_I}, s{S_I}, s{t0}")

PRB = 56
def rows_load(A):
    R = PRB; t0 = 64; va, vb = R + 24, R + 25
    A(f"s_lshl_b32 s{t0}, s{S_I}, 4")
    A(f"s_add_u32 s{t0}, s{t0}, s{S_C}")
    A(f"s_lshl_b32 s{t0}, s{t0}, 2")
    A(f"s_add_u32 s{t0}, s{t0}, s{S_RG}")
    A(f"s_mul_i32 s{t0}, s{t0}, 1792")
    A(f"v_lshlrev_b32 v{va}, 4, v0")
    A(f"v_mov_b32 v{vb}, {hex(BIG)}")
    A(f"v_cmp_gt_u32 vcc, 56, v0")
    A(f"v_cndmask_b32 v{va}, v{vb}, v{va}, vcc")
    A(f"buffer_load_dwordx4 {v(R,4)}, v{va}, {s(SRD_X,4)}, s{t0} offen")
    A(f"buffer_load_dwordx4 {v(R+4,4)}, v{va}, {s(SRD_X,4)}, s{t0} offen offset:896")

def rows_compute(A):
    R = PRB; ones = R + 24
    A(f"v_mov_b32 v{ones}, 0x3f803f80")
    S_ = [R + 30, R + 31, R + 32, R + 33]
    for k in range(4): A(f"v_mov_b32 v{S_[k]}, 0")
    for d in range(4):
        for rr in range(2):
            x = R + 4 * rr + d
            A(f"v_dot2_f32_bf16 v{S_[2*rr]}, v{x}, v{ones}, v{S_[2*rr]}")
            A(f"v_dot2_f32_bf16 v{S_[2*rr+1]}, v{x}, v{x}, v{S_[2*rr+1]}")
    dpp_row_allreduce(A, S_)
    allreduce_rows(A, "add", S_, [R + 34, R + 35, R + 36, R + 37])
    A(f"v_cmp_eq_u32 vcc, 1, v0")
    A(f"v_cndmask_b32 v{S_[0]}, v{S_[0]}, v{S_[2]}, vcc")
    A(f"v_cndmask_b32 v{S_[1]}, v{S_[1]}, v{S_[3]}, vcc")
    A(f"v_mul_f32 v{S_[0]}, {fhex(1/448)}, v{S_[0]}")
    A(f"v_mul_f32 v{S_[1]}, {fhex(1/448)}, v{S_[1]}")
    A(f"v_fma_f32 v{S_[1]}, -v{S_[0]}, v{S_[0]}, v{S_[1]}")
    A(f"v_max_f32 v{S_[1]}, 0, v{S_[1]}")
    A(f"v_add_f32 v{S_[1]}, {fhex(1e-5)}, v{S_[1]}")
    A(f"v_rsq_f32 v{R+26}, v{S_[1]}")
    A(f"v_mul_f32 v{R+27}, v{S_[0]}, v{R+26}")
    A(f"v_sub_f32 v{R+27}, 0, v{R+27}")

def rows_publish(A):
    R = PRB; t0 = 64; G = R + 30
    A(f"s_lshl_b32 s{t0}, s{S_I}, 4")
    A(f"s_add_u32 s{t0}, s{t0}, s{S_C}")
    A(f"s_lshl_b32 s{t0}, s{t0}, 2")
    A(f"s_add_u32 s{t0}, s{t0}, s{S_RG}")
    A(f"s_lshl_b32 s{t0}, s{t0}, 5")
    A(f"s_add_u32 s{t0}, s{t0}, {WS_ST1}")
    A(f"v_mov_b32 v{G}, v{R+26}")
    A(f"v_mov_b32 v{G+1}, v{R+27}")
    A(f"v_mov_b32 v{G+2}, s{S_TAG}")
    A(f"v_mov_b32 v{G+3}, s{S_TAG+1}")
    A(f"v_lshlrev_b32 v{R+34}, 4, v0")
    A(f"s_mov_b64 exec, 3")
    A(f"buffer_store_dwordx4 {v(G,4)}, v{R+34}, {s(SRD_WS,4)}, s{t0} offen sc1")
    A(f"s_mov_b64 exec, -1")

def cols_load(A, typ, skip):
    R = PRB; t0, t1, t2, t3 = T4; va, vb = R + 24, R + 25
    nt = 12 if typ == "A" else 14
    A(f"s_cmp_ge_u32 s{S_I}, {nt}")
    A(f"s_cbranch_scc1 {skip}")
    if typ == "A":
        stride = 2688
        A(f"s_lshr_b32 s{t0}, s{S_I}, 2")
        A(f"s_mul_i32 s{t0}, s{t0}, 896")
        A(f"s_mul_i32 s{t1}, s{S_G}, 112")
        A(f"s_add_u32 s{t0}, s{t0}, s{t1}")
        A(f"s_bfe_u32 s{t1}, s{S_I}, 0x10001")
        A(f"s_mul_i32 s{t1}, s{t1}, 56")
        A(f"s_add_u32 s{t0}, s{t0}, s{t1}")
        A(f"s_and_b32 s{t1}, s{S_I}, 1")
        A(f"s_lshl_b32 s{t1}, s{t1}, 5")
        A(f"s_add_u32 s{t0}, s{t0}, s{t1}")
    else:
        stride = 3584
        A(f"s_mul_i32 s{t0}, s{S_G}, 224")
        A(f"s_lshl_b32 s{t1}, s{S_I}, 5")
        A(f"s_add_u32 s{t0}, s{t0}, s{t1}")
        A(f"s_cmp_lt_u32 s{S_I}, 7")
        csel(A, t1, 1792, -224)
        A(f"s_add_u32 s{t0}, s{t0}, s{t1}")
    A(f"s_mul_i32 s{t2}, s{S_RG}, {112*stride}")
    A(f"s_add_u32 s{t0}, s{t0}, s{t2}")
    A(f"v_lshrrev_b32 v{va}, 1, v0")
    A(f"v_mul_u32_u24 v{va}, {stride}, v{va}")
    A(f"v_and_b32 v{vb}, 1, v0")
    A(f"v_lshl_add_u32 v{va}, v{vb}, 4, v{va}")
    for m in range(4):
        if m == 3:
            A(f"v_mov_b32 v{vb}, {hex(BIG)}")
            A(f"v_cmp_gt_u32 vcc, 32, v0")
            A(f"v_cndmask_b32 v{va}, v{vb}, v{va}, vcc")
        A(f"buffer_load_dwordx4 {v(R+8+4*m,4)}, v{va}, {s(SRD_W,4)}, s{t0} offen")
        if m < 3: A(f"s_add_u32 s{t0}, s{t0}, {32*stride}")
    A.label(skip)

def cols_compute(A, typ, skip):
    R = PRB
    nt = 12 if typ == "A" else 14
    A(f"s_cmp_ge_u32 s{S_I}, {nt}")
    A(f"s_cbranch_scc1 {skip}")
    lo, hi = R + 0, R + 1
    A(f"v_mov_b32 v{lo}, 0x00003f80")
    A(f"v_mov_b32 v{hi}, 0x3f800000")
    acc = [R + 30 + k for k in range(8)]
    for k in range(8): A(f"v_mov_b32 v{acc[k]}, 0")
    for m in range(4):
        for d in range(4):
            x = R + 8 + 4 * m + d
            A(f"v_dot2_f32_bf16 v{acc[2*d]}, v{x}, v{lo}, v{acc[2*d]}")
            A(f"v_dot2_f32_bf16 v{acc[2*d+1]}, v{x}, v{hi}, v{acc[2*d+1]}")
    dpp_row_allreduce(A, acc, steps=(8, 4, 2))
    allreduce_rows(A, "add", acc, [R + 2 + k for k in range(8)])
    A(f"v_lshrrev_b32 v{R+2}, 1, v0")
    A(f"v_mov_b32 v{R+28}, v{acc[0]}")
    A(f"v_mov_b32 v{R+29}, v{acc[1]}")
    for d in range(1, 4):
        A(f"v_cmp_eq_u32 vcc, {d}, v{R+2}")
        A(f"v_cndmask_b32 v{R+28}, v{R+28}, v{acc[2*d]}, vcc")
        A(f"v_cndmask_b32 v{R+29}, v{R+29}, v{acc[2*d+1]}, vcc")
    A.label(skip)

def cols_publish(A, typ, skip):
    R = PRB; t0 = 64
    nt = 12 if typ == "A" else 14
    A(f"s_cmp_ge_u32 s{S_I}, {nt}")
    A(f"s_cbranch_scc1 {skip}")
    A(f"s_mul_i32 s{t0}, s{S_C}, 14")
    A(f"s_add_u32 s{t0}, s{t0}, s{S_I}")
    A(f"s_lshl_b32 s{t0}, s{t0}, 2")
    A(f"s_add_u32 s{t0}, s{t0}, s{S_RG}")
    A(f"s_lshl_b32 s{t0}, s{t0}, 7")
    A(f"s_add_u32 s{t0}, s{t0}, {WS_CS}")
    G2 = R + 36
    A(f"v_mov_b32 v{G2}, v{R+28}")
    A(f"v_mov_b32 v{G2+1}, v{R+29}")
    A(f"v_mov_b32 v{G2+2}, s{S_TAG}")
    A(f"v_mov_b32 v{G2+3}, s{S_TAG+1}")
    A(f"v_and_b32 v{R+35}, 1, v0")
    A(f"v_lshrrev_b32 v{R+34}, 1, v0")
    A(f"v_lshl_add_u32 v{R+34}, v{R+35}, 2, v{R+34}")
    A(f"v_lshlrev_b32 v{R+34}, 4, v{R+34}")
    A(f"s_mov_b64 exec, 0xff")
    A(f"buffer_store_dwordx4 {v(G2,4)}, v{R+34}, {s(SRD_WS,4)}, s{t0} offen sc1")
    A(f"s_mov_b64 exec, -1")
    A.label(skip)

def kperm16(A, rho, out, t):
    A(f"v_and_b32 v{out}, 3, v{rho}")
    A(f"v_lshrrev_b32 v{t}, 2, v{rho}")
    A(f"v_lshl_add_u32 v{out}, v{t}, 3, v{out}")

def voff_wq(A, beta, dst, t, s_col):
    n, rho, c, k = t
    A(f"v_add_u32 v{n}, {64*beta}, v0")
    m = magic_div(24, 384)
    A(f"v_mul_u32_u24 v{rho}, {m}, v{n}")
    A(f"v_lshrrev_b32 v{rho}, 16, v{rho}")
    A(f"v_mul_u32_u24 v{c}, 24, v{rho}")
    A(f"v_sub_u32 v{c}, v{n}, v{c}")
    kperm16(A, rho, k, n)
    A(f"v_mul_u32_u24 v{dst}, 2688, v{k}")
    A(f"v_bfe_u32 v{k}, v{rho}, 1, 2")
    A(f"v_lshrrev_b32 v{n}, 1, v{c}")
    A(f"v_xor_b32 v{n}, v{n}, v{k}")
    A(f"v_lshrrev_b32 v{k}, 2, v{n}")
    A(f"v_mul_u32_u24 v{k}, 896, v{k}")
    A(f"v_add_u32 v{dst}, v{dst}, v{k}")
    A(f"v_bfe_u32 v{k}, v{n}, 1, 1")
    A(f"v_mul_u32_u24 v{k}, 56, v{k}")
    A(f"v_add_u32 v{dst}, v{dst}, v{k}")
    A(f"v_and_b32 v{n}, 1, v{n}")
    A(f"v_lshl_add_u32 v{dst}, v{n}, 5, v{dst}")
    A(f"v_and_b32 v{c}, 1, v{c}")
    A(f"v_lshl_add_u32 v{dst}, v{c}, 4, v{dst}")
    A(f"v_add_u32 v{dst}, s{s_col}, v{dst}")

def voff_wz(A, beta, dst, t, s_col):
    n, rho, c, k = t
    A(f"v_add_u32 v{n}, {64*beta}, v0")
    m = magic_div(28, 448)
    A(f"v_mul_u32_u24 v{rho}, {m}, v{n}")
    A(f"v_lshrrev_b32 v{rho}, 16, v{rho}")
    A(f"v_mul_u32_u24 v{c}, 28, v{rho}")
    A(f"v_sub_u32 v{c}, v{n}, v{c}")
    kperm16(A, rho, k, n)
    A(f"v_mul_u32_u24 v{dst}, 3584, v{k}")
    A(f"v_bfe_u32 v{k}, v{rho}, 2, 1")
    A(f"v_lshrrev_b32 v{n}, 1, v{c}")
    A(f"v_xor_b32 v{n}, v{n}, v{k}")
    A(f"v_lshl_add_u32 v{dst}, v{n}, 5, v{dst}")
    A(f"v_mov_b32 v{k}, 1792")
    A(f"v_mov_b32 v{rho}, -224")
    A(f"v_cmp_gt_u32 vcc, 7, v{n}")
    A(f"v_cndmask_b32 v{k}, v{rho}, v{k}, vcc")
    A(f"v_add_u32 v{dst}, v{dst}, v{k}")
    A(f"v_and_b32 v{c}, 1, v{c}")
    A(f"v_lshl_add_u32 v{dst}, v{c}, 4, v{dst}")
    A(f"v_add_u32 v{dst}, s{s_col}, v{dst}")

DK = [0, 4, 32, 36]
def loader_p1(A, typ, ell, opt):
    P = f"p1{typ}l{ell}"
    isA = typ == "A"
    XS, WS_ = (XSA, WSA) if isA else (XSB, WSB)
    stride = 2688 if isA else 3584
    NB = 6 if isA else 7
    voff = voff_wq if isA else voff_wz
    t = (20, 21, 22, 23)
    A(f"s_mul_i32 s68, s{S_G}, {112 if isA else 224}")
    pieces = []
    wb = {}
    nxt = [8]
    def base(b):
        if b not in wb:
            wb[b] = nxt[0]; nxt[0] += 1
            voff(A, b, wb[b], t, 68)
        return wb[b]
    def wp(b, ms):
        r = base(b)
        for m in ms: pieces.append(("w", r, DK[m] * stride, (NB * m + b) * 1024))
    if ell < 2:
        A(f"v_lshrrev_b32 v20, 4, v0")
        A(f"v_add_u32 v20, {4*ell}, v20")
        A(f"v_and_b32 v21, 7, v0")
        A(f"v_xor_b32 v20, v20, v21")
        A(f"v_and_b32 v20, 7, v20")
        A(f"v_lshlrev_b32 v20, 4, v20")
        A(f"v_lshrrev_b32 v21, 3, v0")
        A(f"s_lshl_b32 s72, s{S_I}, 7")
        A(f"s_add_u32 s72, s72, {8*ell}")
        A(f"v_add_u32 v21, s72, v21")
        A(f"v_mul_u32_u24 v9, 896, v21")
        A(f"v_add_u32 v9, v9, v20")
        nxt[0] = 10
        if isA:
            A(f"v_subrev_u32 v21, 16, v21")
            A(f"v_max_i32 v21, 0, v21")
            A(f"v_mul_u32_u24 v8, 896, v21")
            A(f"v_add_u32 v8, v8, v20")
            for m in range(9):
                p = ell + 2 * m
                pieces.append(("x", 8 if m == 0 else 9, 0 if m == 0 else (m - 1) * 14336, p * 1024))
            wp(ell, (0, 1))
        else:
            for m in range(8):
                pieces.append(("x", 9, m * 14336, (ell + 2 * m) * 1024))
            wp(ell, (0, 1, 2))
    elif isA:
        if ell == 2: wp(2, range(4)); wp(3, range(4)); wp(0, (2, 3))
        else: wp(4, range(4)); wp(5, range(4)); wp(1, (2, 3))
    else:
        if ell == 2: wp(2, range(4)); wp(3, range(4)); wp(0, (3,)); wp(1, (3,)); wp(6, (0,))
        else: wp(4, range(4)); wp(5, range(4)); wp(6, (1, 2, 3))
    npc = len(pieces)
    A("s_waitcnt lgkmcnt(0)")
    srd(A, SRD_X, P_X, 2048 * 896)
    if isA: srd(A, SRD_W, P_WQKV, 448 * 2688)
    else: srd(A, SRD_W, P_WIN, 448 * 3584)
    srd(A, SRD_WS, P_WS, WS_BYTES)
    def issue(S_):
        if opt.get("nodma") and S_ >= 3: return
        sl = S_ % 3
        for kind, vr, so, lo in pieces:
            b, ss, step, sr = (LX, XS, 128, SRD_X) if kind == "x" else (LW, WS_, 64 * stride, SRD_W)
            A(f"s_mov_b32 m0, {b + sl * ss + lo}")
            A(f"s_mov_b32 s73, {S_ * step + so}")
            A(f"buffer_load_dwordx4 v{vr}, {s(sr,4)}, s73 offen lds")
    nt = 12 if isA else 14
    def table_loads():
        if ell < 3:
            A(f"s_lshl_b32 s72, s{S_I}, 7")
            A(f"s_add_u32 s72, s72, {64*ell}")
            A(f"v_add_u32 v24, s72, v0")
            A(f"v_subrev_u32 v24, 16, v24")
            A(f"v_max_i32 v24, 0, v24")
            A(f"v_lshlrev_b32 v24, 4, v24")
            if ell == 2:
                A(f"s_lshl_b32 s72, s{S_I}, 7")
                A(f"s_add_u32 s72, s72, 127")
                A(f"s_lshl_b32 s72, s72, 4")
                A(f"v_min_u32 v24, s72, v24")
            A(f"buffer_load_dwordx4 v[28:31], v24, {s(SRD_WS,4)}, 0 offen sc1")
        if ell >= 2:
            A(f"v_add_u32 v25, {64*(ell-2)}, v0")
            A(f"v_lshrrev_b32 v26, 3, v25")
            A(f"v_min_u32 v26, {nt-1}, v26")
            A(f"s_mul_i32 s72, s{S_C}, 14")
            A(f"v_add_u32 v26, s72, v26")
            A(f"v_lshlrev_b32 v26, 9, v26")
            A(f"v_and_b32 v25, 7, v25")
            A(f"v_lshl_add_u32 v26, v25, 4, v26")
            A(f"s_mov_b32 s72, {WS_CS}")
            for q in range(4):
                A(f"buffer_load_dwordx4 {v(32+4*q,4)}, v26, {s(SRD_WS,4)}, s72 offen offset:{128*q} sc1")
    def table_check(fail):
        regs = ([28] if ell < 3 else []) + ([32, 36, 40, 44] if ell >= 2 else [])
        first = True
        for r in regs:
            A(f"v_cmp_eq_u32 vcc, s{S_TAG}, v{r+2}")
            A(f"v_cmp_eq_u32 s[74:75], s{S_TAG+1}, v{r+3}")
            A(f"s_and_b64 vcc, vcc, s[74:75]")
            if first: A(f"s_mov_b64 s[76:77], vcc")
            else: A(f"s_and_b64 s[76:77], s[76:77], vcc")
            first = False
        A(f"s_cmp_eq_u64 s[76:77], -1")
        A(f"s_cbranch_scc0 {fail}")
    def table_write():
        if ell < 3:
            A(f"v_lshlrev_b32 v24, 2, v0")
            A(f"v_add_u32 v24, {LA1 + 256*ell}, v24")
            if ell == 2: A("s_mov_b64 exec, 0xffff")
            A(f"ds_write_b32 v24, v28")
            A(f"ds_write_b32 v24, v29 offset:{LB1-LA1}")
            if ell == 2: A("s_mov_b64 exec, -1")
        if ell >= 2:
            pk(A, "add", 32, ('p', 32), ('p', 36))
            pk(A, "add", 40, ('p', 40), ('p', 44))
            pk(A, "add", 32, ('p', 32), ('p', 40))
            A(f"v_lshlrev_b32 v24, 3, v0")
            A(f"v_add_u32 v24, {LCS + 512*(ell-2)}, v24")
            if ell == 3: A(f"s_mov_b32 exec_hi, 0xffff")
            A(f"ds_write_b64 v24, v[32:33]")
            if ell == 3: A("s_mov_b64 exec, -1")
    TL = opt.get("tl", 4)
    stamp(A, 1)
    issue(0); issue(1)
    stamp(A, 2)
    A(f"s_waitcnt vmcnt({npc})")
    stamp(A, 3)
    A("s_barrier")
    issue(2)
    A(f"v_mov_b32 v24, {LNON}")
    A("ds_read_b64 v[26:27], v24")
    A("s_waitcnt lgkmcnt(0)")
    A(f"v_readfirstlane_b32 s{S_TAG}, v26")
    A(f"v_readfirstlane_b32 s{S_TAG+1}, v27")
    A(f"s_mov_b32 s{S_PC}, {POLL_MAX}")
    for n in range(1, 7):
        if n == TL + 1:
            A("s_waitcnt vmcnt(0)" if n + 1 > 6 or True else "")
            table_check(f"{P}_retry")
            A.label(f"{P}_tok")
            table_write()
            A("s_waitcnt lgkmcnt(0)")
        else:
            A(f"s_waitcnt vmcnt({npc if n + 1 <= 6 else 0})")
        stamp(A, 3 + n)
        A("s_barrier")
        if n == TL: table_loads()
        if n + 2 <= 6: issue(n + 2)
    A("s_barrier")
    stamp(A, 10)
    A(f"s_branch {P}_done")
    A.label(f"{P}_retry")
    A(f"s_sub_u32 s{S_PC}, s{S_PC}, 1")
    A(f"s_cmp_eq_u32 s{S_PC}, 0")
    A(f"s_cbranch_scc1 {P}_tok")
    table_loads()
    A("s_waitcnt vmcnt(0)")
    table_check(f"{P}_retry")
    A(f"s_branch {P}_tok")
    A.label(f"{P}_done")

VXA0, VXA1, VW0, VW1 = 2, 3, 4, 5
XF, WR, ACC = 8, 32, 96
def qreg(dt, T): return ACC + 4 * (2 * dt + T)
def kreg(dt, tau): return ACC + 16 + 4 * (3 * dt + tau)
def vreg(dt, tau): return ACC + 40 + 4 * (3 * dt + tau)
def zreg(n, T): return ACC + 4 * (2 * n + T)
def b_tiles(par):
    return [('z2' if par == 0 else 'z1', u) for u in range(7)]

def compute_addr(A, typ):
    isA = typ == "A"
    A("v_and_b32 v8, 15, v0")
    A("v_lshrrev_b32 v9, 4, v0")
    A("v_lshrrev_b32 v10, 1, v8")
    A("v_xor_b32 v10, v10, v9")
    A("v_lshlrev_b32 v10, 4, v10")
    A("v_lshl_add_u32 v10, v8, 7, v10")
    A(f"s_lshl_b32 s72, s{S_RG}, 12")
    A(f"v_add_u32 v{VXA0}, s72, v10")
    A(f"v_xor_b32 v{VXA1}, 64, v{VXA0}")
    A("v_lshrrev_b32 v10, 2, v8")
    A("v_lshl_add_u32 v10, v9, 2, v10")
    A("v_and_b32 v11, 3, v8")
    A("v_lshlrev_b32 v11, 3, v11")
    A(f"v_mul_u32_u24 v12, {384 if isA else 448}, v10")
    A(f"v_add_u32 v12, v12, v11")
    A(f"v_add_u32 v12, {LW}, v12")
    if isA:
        A("v_and_b32 v11, 1, v9")
        A("v_lshlrev_b32 v11, 1, v11")
        A("v_lshrrev_b32 v13, 3, v8")
        A("v_add_u32 v11, v11, v13")
        A(f"s_lshr_b32 s72, s{S_W}, 2")
        A(f"s_lshl_b32 s72, s72, 1")
        A(f"v_xor_b32 v11, s72, v11")
        A(f"v_lshl_add_u32 v{VW0}, v11, 5, v12")
        A(f"v_xor_b32 v11, 1, v11")
        A(f"v_lshl_add_u32 v{VW1}, v11, 5, v12")
    else:
        A("v_and_b32 v11, 1, v9")
        A(f"v_lshl_add_u32 v{VW0}, v11, 5, v12")
        A(f"v_xor_b32 v11, 1, v11")
        A(f"v_lshl_add_u32 v{VW1}, v11, 5, v12")

def main_loop(A, typ, par, P, hook0, opt={}):
    isA = typ == "A"
    XS, WS_ = (XSA, WSA) if isA else (XSB, WSB)
    stride = 384 if isA else 448
    NX = 3 if isA else 2
    F = 6 if isA else 7
    fs = 2
    L = LG(A)
    if isA:
        tl = [(sec, dt) for sec in range(3) for dt in range(2)]
        def waddr(f):
            sec, dt = tl[f]; return (VW1 if dt else VW0), sec * 128
    else:
        tl = b_tiles(par)
        def waddr(f):
            kind, u = tl[f]; t = u if kind == 'z2' else 7 + u
            return (VW1 if t & 1 else VW0), (t >> 1) * 64
    def rdX(kk):
        if opt.get("nords"): return
        for tau in range(NX):
            A(f"ds_read_b128 {v(XF + 12*kk + 4*tau, 4)}, v{VXA1 if kk else VXA0} offset:{LX + tau*2048}")
            L.issue(("x", kk))
    def rdW(f, kk):
        if opt.get("nords"): return
        ad, off = waddr(f); r = WR + 4 * f
        for sec in range(2):
            A(f"ds_read_b64_tr_b16 {v(r + 2*sec, 2)}, v{ad} offset:{off + (32*kk + 16*sec) * stride}")
            L.issue(("w", f))
    def mm(f, kk): _mm(A, f, kk)
    def _mm(A, f, kk):
        if opt.get("nomm"): return
        r = WR + 4 * f; xb = XF + 12 * kk
        if isA:
            sec, dt = tl[f]
            if sec == 0:
                for T in range(2): mfma(A, qreg(dt, T), r, xb + 4 * (T + 1), qreg(dt, T))
            elif sec == 1:
                for tau in range(3): mfma(A, kreg(dt, tau), r, xb + 4 * tau, kreg(dt, tau))
            else:
                for tau in range(3): mfma(A, vreg(dt, tau), xb + 4 * tau, r, vreg(dt, tau))
        else:
            kind, u = tl[f]
            for T in range(2):
                if kind == 'z2': mfma(A, zreg(f, T), xb + 4 * T, r, zreg(f, T))
                else: mfma(A, zreg(f, T), r, xb + 4 * T, zreg(f, T))
    def rd_items_x():
        return [] if opt.get("nords") else [('r', f"ds_read_b128 {v(XF + 4*tau, 4)}, v{VXA0} offset:{LX + tau*2048}", ("x", 0)) for tau in range(NX)]
    def rd_items_w(f):
        if opt.get("nords"): return []
        ad, off = waddr(f); r = WR + 4 * f
        return [('r', f"ds_read_b64_tr_b16 {v(r + 2*sec, 2)}, v{ad} offset:{off + 16*sec*stride}", ("w", f)) for sec in range(2)]
    rds = rd_items_x()
    for f in range(fs + 1): rds += rd_items_w(f)
    tailseq = []
    tm = []
    for f in range(fs + 1, F):
        lines = []
        _mm(lambda s_: lines.append(s_), f, 1)
        tm.append((f, lines))
    nm = sum(len(x[1]) for x in tm)
    per = 2
    for f, lines in tm:
        for ln in lines:
            tailseq.append(('m', ln))
            for _ in range(per):
                if rds: tailseq.append(rds.pop(0))
        rds += rd_items_w(f)
    tailseq += rds
    nacc = 64 if isA else 56
    for r in range(nacc): A(f"v_mov_b32 v{ACC + r}, 0")
    A(f"s_mov_b32 s70, {XS}"); A(f"s_mov_b32 s71, {-2*XS}")
    A(f"s_mov_b32 s72, {WS_}"); A(f"s_mov_b32 s73, {-2*WS_}")
    A(f"s_mov_b32 s{S_SL}, 0")
    A(f"s_mov_b32 s{S_LC}, 7")
    stamp(A, 1)
    A("s_waitcnt lgkmcnt(0)")
    A("s_barrier")
    stamp(A, 2)
    for it in tailseq:
        if it[0] == 'r': A(it[1]); L.issue(it[2])
    start = list(L.p)
    A.label(f"{P}_loop")
    rdX(1)
    for f in range(F):
        if f == 0: L.wait(("x", 0))
        L.wait(("w", f))
        mm(f, 0)
        rdW(f, 1)
    for f in range(fs + 1):
        if f == 0: L.wait(("x", 1))
        L.wait(("w", f))
        mm(f, 1)
        if f == 0:
            A(f"s_add_u32 s{S_SL}, s{S_SL}, 1")
            A(f"s_cmp_eq_u32 s{S_SL}, 3")
            A(f"s_cselect_b32 s68, s71, s70")
            A(f"s_cselect_b32 s69, s73, s72")
            A(f"s_cselect_b32 s{S_SL}, 0, s{S_SL}")
        if f == 1:
            A(f"v_add_u32 v{VXA0}, s68, v{VXA0}"); A(f"v_add_u32 v{VXA1}, s68, v{VXA1}")
            A(f"v_add_u32 v{VW0}, s69, v{VW0}"); A(f"v_add_u32 v{VW1}, s69, v{VW1}")
    L.wait_all()
    A("s_barrier")
    A(f"s_cmp_lg_u32 s{S_LC}, 7")
    A(f"s_cbranch_scc1 {P}_nohook")
    hook0()
    A.label(f"{P}_nohook")
    for it in tailseq:
        if it[0] == 'm': A(it[1])
        else: A(it[1]); L.issue(it[2])
    A(f"s_sub_u32 s{S_LC}, s{S_LC}, 1")
    A(f"s_cmp_lg_u32 s{S_LC}, 0")
    A(f"s_cbranch_scc1 {P}_loop")
    assert start == L.p, (start, L.p)
    L.wait_all()
    stamp(A, 3)

def epilogue_A(A, P, opt):
    stf = opt.get("stflags", " sc1")
    aL, bL = 8, 11
    aq, bq = 14, 16
    ZERO, NEG = 18, 19
    aR, bR = 20, 32
    csV = 44
    csQ, csK = 48, 56
    TM = [64 + 2 * i for i in range(8)]
    SB = 80
    t0, t1, t2, t3, t4 = 4, 5, 6, 7, 46
    L = LG(A)
    A(f"v_and_b32 v{t0}, 15, v0")
    A(f"v_lshrrev_b32 v{t1}, 4, v0")
    A(f"s_lshl_b32 s72, s{S_RG}, 7")
    A(f"v_lshlrev_b32 v{t0}, 2, v{t0}")
    A(f"v_lshlrev_b32 v{t1}, 4, v{t1}")
    A(f"s_add_u32 s72, s72, {LA1}")
    A(f"v_add_u32 v{t2}, s72, v{t0}")
    A(f"v_add_u32 v{t3}, s72, v{t1}")
    A(f"s_lshr_b32 s73, s{S_W}, 2")
    A(f"s_lshl_b32 s73, s73, 7")
    A(f"s_add_u32 s73, s73, {LCS}")
    A(f"v_add_u32 v{t0}, s73, v{t0}")
    A(f"v_add_u32 v{t1}, s73, v{t1}")
    for dt in range(2):
        A(f"ds_read_b128 {v(csQ+4*dt,4)}, v{t1} offset:{64*dt}"); L.issue("q")
    for tau in range(3):
        A(f"ds_read_b32 v{aL+tau}, v{t2} offset:{64*tau}"); L.issue("q")
        A(f"ds_read_b32 v{bL+tau}, v{t2} offset:{64*tau+LB1-LA1}"); L.issue("q")
    for dt in range(2):
        A(f"ds_read_b128 {v(csK+4*dt,4)}, v{t1} offset:{256+64*dt}"); L.issue("k")
    for dt in range(2):
        A(f"ds_read_b32 v{csV+dt}, v{t0} offset:{512+64*dt}"); L.issue("v")
    L.wait("q")
    for tau in range(3):
        A(f"ds_read_b128 {v(aR+4*tau,4)}, v{t3} offset:{64*tau}"); L.issue("v")
        A(f"ds_read_b128 {v(bR+4*tau,4)}, v{t3} offset:{64*tau+LB1-LA1}"); L.issue("v")
    sc = LOG2E * 28 ** -0.5
    for T in range(2):
        A(f"v_mul_f32 v{aq+T}, {fhex(sc)}, v{aL+T+1}")
        A(f"v_mul_f32 v{bq+T}, {fhex(sc)}, v{bL+T+1}")
    tc = 0
    for dt in range(2):
        for T in range(2):
            for h in range(2):
                z = qreg(dt, T) + 2 * h; t_ = TM[tc % 8]; tc += 1
                pk(A, "mul", t_, ('p', csQ + 4 * dt + 2 * h), ('b', bq + T))
                pk(A, "fma", z, ('p', z), ('b', aq + T), ('p', t_))
    L.wait("k")
    for dt in range(2):
        for tau in range(3):
            for h in range(2):
                z = kreg(dt, tau) + 2 * h; t_ = TM[tc % 8]; tc += 1
                pk(A, "mul", t_, ('p', csK + 4 * dt + 2 * h), ('b', bL + tau))
                pk(A, "fma", z, ('p', z), ('b', aL + tau), ('p', t_))
    smask(A, 74, lane_mask(lambda g, c: g == 3))
    A(f"v_mov_b32 v{ZERO}, 0")
    A(f"v_mov_b32 v{NEG}, {fhex(-3.0e38)}")
    for T in range(2):
        d = qreg(0, T); e = qreg(1, T)
        cvt2(A, d, d, d + 1); cvt2(A, d + 1, d + 2, d + 3); cvt2(A, d + 2, e, e + 1); cvt2(A, d + 3, e + 2, e + 3)
        A(f"v_cndmask_b32 v{d+2}, v{d+2}, v{ZERO}, s[74:75]")
        A(f"v_cndmask_b32 v{d+3}, v{d+3}, v{ZERO}, s[74:75]")
    for tau in range(3):
        d = kreg(0, tau); e = kreg(1, tau)
        cvt2(A, d, d, d + 1); cvt2(A, d + 1, d + 2, d + 3); cvt2(A, d + 2, e, e + 1); cvt2(A, d + 3, e + 2, e + 3)
    for T in range(2):
        mfma(A, SB + 8 * T, kreg(0, T), qreg(0, T), None)
        mfma(A, SB + 8 * T + 4, kreg(0, T + 1), qreg(0, T), None)
    L.wait("v")
    for dt in range(2):
        for tau in range(3):
            for h in range(2):
                z = vreg(dt, tau) + 2 * h; t_ = TM[tc % 8]; tc += 1
                pk(A, "mul", t_, ('p', bR + 4 * tau + 2 * h), ('b', csV + dt))
                pk(A, "fma", z, ('p', z), ('p', aR + 4 * tau + 2 * h), ('p', t_))
    VB = vreg(0, 0)
    for dt in range(2):
        for tau in range(3):
            sb = vreg(dt, tau); d = VB + 12 * dt + 2 * tau
            cvt2(A, d, sb, sb + 1); cvt2(A, d + 1, sb + 2, sb + 3)
    MP, MC = 80, 88
    for r in range(4):
        smask(A, MC + 2 * r, lane_mask(lambda g, c: (c - 4 * g - r) >= 0 and (c - 4 * g - r) % 2 == 0 and (c - 4 * g - r) <= 14))
        smask(A, MP + 2 * r, lane_mask(lambda g, c: (4 * g + r - c) >= 2 and (c - r) % 2 == 0))
    def mask_tile(T):
        for r in range(4):
            A(f"v_cndmask_b32 v{SB+8*T+r}, v{NEG}, v{SB+8*T+r}, s[{MP+2*r}:{MP+2*r+1}]")
            A(f"v_cndmask_b32 v{SB+8*T+4+r}, v{NEG}, v{SB+8*T+4+r}, s[{MC+2*r}:{MC+2*r+1}]")
    mask_tile(1)
    A(f"s_or_b32 s72, s{S_I}, s{S_RG}")
    A(f"s_cmp_eq_u32 s72, 0")
    A(f"s_cselect_b64 s[76:77], 0, -1")
    for r in range(4):
        A(f"s_and_b64 s[{MP+2*r}:{MP+2*r+1}], s[{MP+2*r}:{MP+2*r+1}], s[76:77]")
    mask_tile(0)
    MX = [64, 65]; TX = [66, 67]
    for T in range(2):
        b = SB + 8 * T
        A(f"v_max3_f32 v{MX[T]}, v{b}, v{b+1}, v{b+2}")
        A(f"v_max3_f32 v{TX[T]}, v{b+3}, v{b+4}, v{b+5}")
    for T in range(2):
        b = SB + 8 * T
        A(f"v_max3_f32 v{MX[T]}, v{MX[T]}, v{b+6}, v{b+7}")
    for T in range(2):
        A(f"v_max_f32 v{MX[T]}, v{MX[T]}, v{TX[T]}")
    allreduce_rows(A, "max", MX, TX)
    for T in range(2):
        b = SB + 8 * T
        for h in range(4):
            pk(A, "add", b + 2 * h, ('p', b + 2 * h), ('b', MX[T]), neg=[0, 1])
    for T in range(2):
        b = SB + 8 * T
        for r in range(8): A(f"v_exp_f32 v{b+r}, v{b+r}")
    SM = [68, 70]; T2 = [72, 74]
    for T in range(2):
        b = SB + 8 * T
        pk(A, "add", SM[T], ('p', b), ('p', b + 2))
        pk(A, "add", T2[T], ('p', b + 4), ('p', b + 6))
    for T in range(2): pk(A, "add", SM[T], ('p', SM[T]), ('p', T2[T]))
    for T in range(2): A(f"v_add_f32 v{SM[T]}, v{SM[T]}, v{SM[T]+1}")
    for T in range(2):
        b = SB + 8 * T
        for h in range(4): cvt2(A, b + h, b + 2 * h, b + 2 * h + 1)
    OR_ = {(0, 0): qreg(1, 0), (0, 1): qreg(1, 1), (1, 0): kreg(1, 0), (1, 1): kreg(1, 1)}
    for T in range(2):
        for dt in range(2):
            mfma(A, OR_[(dt, T)], VB + 12 * dt + 2 * T, SB + 8 * T, None)
    allreduce_rows(A, "add", SM, TX)
    for T in range(2): A(f"v_rcp_f32 v{SM[T]}, v{SM[T]}")
    for T in range(2):
        for dt in range(2):
            o = OR_[(dt, T)]
            for h in range(2): pk(A, "mul", o + 2 * h, ('p', o + 2 * h), ('b', SM[T]))
    OF = [48, 52]
    for T in range(2):
        o0, o1 = OR_[(0, T)], OR_[(1, T)]
        cvt2(A, OF[T], o0, o0 + 1); cvt2(A, OF[T] + 1, o0 + 2, o0 + 3)
        cvt2(A, OF[T] + 2, o1, o1 + 1); cvt2(A, OF[T] + 3, o1 + 2, o1 + 3)
        A(f"v_cndmask_b32 v{OF[T]+2}, v{OF[T]+2}, v{ZERO}, s[74:75]")
        A(f"v_cndmask_b32 v{OF[T]+3}, v{OF[T]+3}, v{ZERO}, s[74:75]")
    A(f"s_lshl_b32 s72, s{S_I}, 3")
    A(f"s_lshl_b32 s73, s{S_RG}, 1")
    A(f"s_add_u32 s72, s72, s73")
    A(f"s_lshl_b32 s72, s72, 4")
    A(f"s_add_u32 s72, s72, s{S_J}")
    A(f"s_lshl_b32 s72, s72, 10")
    A(f"s_add_u32 s72, s72, {WS_O}")
    A(f"s_add_u32 s73, s72, 16384")
    A(f"v_lshlrev_b32 v{t0}, 4, v0")
    for T in range(2):
        A(f"buffer_store_dwordx4 {v(OF[T],4)}, v{t0}, {s(SRD_WS,4)}, s{72 + T} offen{stf}")

def gelu_pairs(A, pairs, tmp, c0, S_C1, S_ONE):
    g = len(tmp)
    for b in range(0, len(pairs), g):
        grp = list(zip(pairs[b:b+g], tmp))
        for y, t in grp: pk(A, "mul", t, ('p', y), ('p', y))
        for y, t in grp: pk(A, "fma", t, ('p', t), ('s', S_C1), ('p', c0))
        for y, t in grp: pk(A, "mul", t, ('p', t), ('p', y))
        for y, t in grp:
            A(f"v_exp_f32 v{t}, v{t}"); A(f"v_exp_f32 v{t+1}, v{t+1}")
        for y, t in grp: pk(A, "add", t, ('p', t), ('s', S_ONE))
        for y, t in grp:
            A(f"v_rcp_f32 v{t}, v{t}"); A(f"v_rcp_f32 v{t+1}, v{t+1}")
        for y, t in grp: pk(A, "mul", y, ('p', y), ('p', t))

def gelu_consts(A, C0, S_C1, S_ONE):
    c0 = -2 * LOG2E * 0.7978845608028654; c1 = c0 * 0.044715
    A(f"s_mov_b32 s{S_C1}, {fhex(c1)}"); A(f"s_mov_b32 s{S_C1+1}, {fhex(c1)}")
    A(f"s_mov_b32 s{S_ONE}, 1.0"); A(f"s_mov_b32 s{S_ONE+1}, 1.0")
    A(f"v_mov_b32 v{C0}, {fhex(c0)}"); A(f"v_mov_b32 v{C0+1}, {fhex(c0)}")

def epilogue_Z2(A, P, opt):
    stf = opt.get("stflags", " sc1")
    S_C1, S_ONE = 62, 78
    aR, bR, csL, C0 = 20, 28, 36, 44
    TM = [48 + 2 * i for i in range(8)]
    SV, SV2 = 64, 72
    VL16 = 14
    t0, t1, t3 = 4, 5, 7
    gelu_consts(A, C0, S_C1, S_ONE)
    A(f"v_and_b32 v{t0}, 15, v0")
    A(f"v_lshrrev_b32 v{t1}, 4, v0")
    A(f"s_lshl_b32 s72, s{S_RG}, 7")
    A(f"s_add_u32 s72, s72, {LA1 + 64}")
    A(f"v_lshlrev_b32 v{t0}, 2, v{t0}")
    A(f"v_lshlrev_b32 v{t1}, 4, v{t1}")
    A(f"v_add_u32 v{t3}, s72, v{t1}")
    A(f"v_add_u32 v{t0}, {LCS}, v{t0}")
    A(f"v_lshlrev_b32 v{VL16}, 4, v0")
    L = LG(A)
    for T in range(2):
        A(f"ds_read_b128 {v(aR+4*T,4)}, v{t3} offset:{64*T}"); L.issue("a")
        A(f"ds_read_b128 {v(bR+4*T,4)}, v{t3} offset:{64*T+LB1-LA1}"); L.issue("a")
    for u in range(7):
        A(f"ds_read_b32 v{csL+u}, v{t0} offset:{64*u}"); L.issue("a")
    L.wait_all()
    pairs = []; tcyc = 0
    for u in range(7):
        for T in range(2):
            for h in range(2):
                z = zreg(u, T) + 2 * h
                t = TM[tcyc % 8]; tcyc += 1
                pk(A, "mul", t, ('p', bR + 4 * T + 2 * h), ('b', csL + u))
                pk(A, "fma", z, ('p', z), ('p', aR + 4 * T + 2 * h), ('p', t))
                pairs.append(z)
    gelu_pairs(A, pairs, TM[:7], C0, S_C1, S_ONE)
    for T in range(2):
        for h in range(2):
            d1 = SV + 4 * T + 2 * h; d2 = SV2 + 4 * T + 2 * h
            for u in range(7):
                z = zreg(u, T) + 2 * h
                if u == 0:
                    pk(A, "mul", d2, ('p', z), ('p', z))
                elif u == 1:
                    pk(A, "add", d1, ('p', zreg(0, T) + 2 * h), ('p', z))
                    pk(A, "fma", d2, ('p', z), ('p', z), ('p', d2))
                else:
                    pk(A, "add", d1, ('p', d1), ('p', z))
                    pk(A, "fma", d2, ('p', z), ('p', z), ('p', d2))
    W1 = 48
    for n in range(8):
        A(f"v_add_f32_dpp v{W1+n}, v{SV+n}, v{SV+n} row_mirror row_mask:0xf bank_mask:0x3")
    for n in range(8):
        A(f"v_add_f32_dpp v{W1+n}, v{SV2+n}, v{SV2+n} row_mirror row_mask:0xf bank_mask:0xc")
    W2 = 56
    for n in range(4):
        A(f"v_add_f32_dpp v{W2+n}, v{W1+n}, v{W1+n} row_half_mirror row_mask:0xf bank_mask:0x5")
    for n in range(4):
        A(f"v_add_f32_dpp v{W2+n}, v{W1+n+4}, v{W1+n+4} row_half_mirror row_mask:0xf bank_mask:0xa")
    smask(A, 74, lane_mask(lambda g, c: c & 2))
    smask(A, 76, lane_mask(lambda g, c: c & 1))
    W3 = 60
    for n in range(2):
        A(f"v_cndmask_b32 v{W3+n}, v{W2+n}, v{W2+n+2}, s[74:75]")
        A(f"v_cndmask_b32 v{W3+2+n}, v{W2+n+2}, v{W2+n}, s[74:75]")
    for n in range(2):
        A(f"v_add_f32_dpp v{W3+n}, v{W3+2+n}, v{W3+n} quad_perm:[2,3,0,1] row_mask:0xf bank_mask:0xf")
    G = SV
    A(f"v_cndmask_b32 v{G}, v{W3}, v{W3+1}, s[76:77]")
    A(f"v_cndmask_b32 v{G+1}, v{W3+1}, v{W3}, s[76:77]")
    A(f"v_add_f32_dpp v{G}, v{G+1}, v{G} quad_perm:[1,0,3,2] row_mask:0xf bank_mask:0xf")
    A(f"v_mov_b32_dpp v{G+1}, v{G} row_ror:8 row_mask:0xf bank_mask:0xf")
    A(f"v_mov_b32 v{G+2}, s{S_TAG}")
    A(f"v_mov_b32 v{G+3}, s{S_TAG+1}")
    A(f"v_bfe_u32 v{G+4}, v0, 2, 1")
    A(f"v_lshlrev_b32 v{G+4}, 4, v{G+4}")
    A(f"v_lshrrev_b32 v{G+5}, 4, v0")
    A(f"v_lshl_add_u32 v{G+4}, v{G+5}, 2, v{G+4}")
    A(f"v_and_b32 v{G+5}, 3, v0")
    A(f"v_add_u32 v{G+4}, v{G+4}, v{G+5}")
    A(f"v_lshlrev_b32 v{G+4}, 4, v{G+4}")
    A(f"s_lshl_b32 s72, s{S_I}, 2")
    A(f"s_add_u32 s72, s72, s{S_RG}")
    A(f"s_lshl_b32 s73, s72, 12")
    A(f"s_add_u32 s73, s73, {WS_ST2}")
    A(f"s_lshl_b32 s72, s{S_G}, 9")
    A(f"s_add_u32 s72, s72, s73")
    smask(A, 74, lane_mask(lambda g, c: c < 8))
    A("s_mov_b64 exec, s[74:75]")
    A(f"buffer_store_dwordx4 {v(G,4)}, v{G+4}, {s(SRD_WS,4)}, s72 offen sc1")
    A("s_mov_b64 exec, -1")
    stamp(A, 4)
    PR = [80, 84, 88, 92]
    A(f"s_mov_b32 s{S_PC}, {POLL_MAX}")
    A.label(f"{P}_again")
    for q in range(4):
        A(f"buffer_load_dwordx4 {v(PR[q],4)}, v{VL16}, {s(SRD_WS,4)}, s73 offen offset:{1024*q} sc1")
    A("s_waitcnt vmcnt(0)")
    for q in range(4):
        A(f"v_cmp_eq_u32 vcc, s{S_TAG}, v{PR[q]+2}")
        A(f"v_cmp_eq_u32 s[76:77], s{S_TAG+1}, v{PR[q]+3}")
        A(f"s_and_b64 vcc, vcc, s[76:77]")
        if q == 0: A("s_mov_b64 s[80:81], vcc")
        else: A("s_and_b64 s[80:81], s[80:81], vcc")
    A("s_cmp_eq_u64 s[80:81], -1")
    A(f"s_cbranch_scc1 {P}_ok")
    A(f"s_sub_u32 s{S_PC}, s{S_PC}, 1")
    A(f"s_cmp_lg_u32 s{S_PC}, 0")
    A(f"s_cbranch_scc1 {P}_again")
    A.label(f"{P}_ok")
    stamp(A, 6)
    a_, b_ = PR[0], PR[1]
    pk(A, "add", PR[0], ('p', PR[0]), ('p', PR[1]))
    pk(A, "add", PR[2], ('p', PR[2]), ('p', PR[3]))
    pk(A, "add", 52, ('p', PR[0]), ('p', PR[2]))
    A("v_mov_b32 v54, v52"); A("v_mov_b32 v55, v53")
    A("v_permlane32_swap_b32 v52, v54"); A("v_permlane32_swap_b32 v53, v55")
    pk(A, "add", 52, ('p', 52), ('p', 54))
    A(f"v_mul_f32 v52, {fhex(1/896)}, v52")
    A(f"v_mul_f32 v53, {fhex(1/896)}, v53")
    A("v_fma_f32 v53, -v52, v52, v53")
    A("v_max_f32 v53, 0, v53")
    A(f"v_add_f32 v53, {fhex(1e-5)}, v53")
    A("v_rsq_f32 v53, v53")
    A("v_mul_f32 v52, v52, v53")
    A("v_sub_f32 v52, 0, v52")
    A("v_and_b32 v54, 31, v0")
    A("v_lshlrev_b32 v54, 2, v54")
    A(f"s_lshl_b32 s72, s{S_W}, 8")
    A(f"s_add_u32 s72, s72, {LSC}")
    A("v_add_u32 v54, s72, v54")
    A("ds_write_b32 v54, v53")
    A("ds_write_b32 v54, v52 offset:128")
    A("v_lshrrev_b32 v55, 4, v0")
    A("v_lshlrev_b32 v55, 4, v55")
    A("v_add_u32 v55, s72, v55")
    A("s_waitcnt lgkmcnt(0)")
    for T in range(2):
        A(f"ds_read_b128 {v(aR+4*T,4)}, v55 offset:{64*T}")
        A(f"ds_read_b128 {v(bR+4*T,4)}, v55 offset:{128+64*T}")
    A(f"s_lshl_b32 s72, s{S_I}, 2")
    A(f"s_add_u32 s72, s72, s{S_RG}")
    A(f"s_mul_i32 s72, s72, {56*1024}")
    A(f"s_mul_i32 s74, s{S_G}, {7*1024}")
    A(f"s_add_u32 s72, s72, s74")
    A(f"s_add_u32 s72, s72, {WS_Z2N}")
    A(f"s_add_u32 s73, s72, 4096")
    A("s_waitcnt lgkmcnt(0)")
    for u in range(7):
        for T in range(2):
            for h in range(2):
                z = zreg(u, T) + 2 * h
                pk(A, "fma", z, ('p', z), ('p', aR + 4 * T + 2 * h), ('p', bR + 4 * T + 2 * h))
        z = zreg(u, 0)
        cvt2(A, z, z, z + 1); cvt2(A, z + 1, z + 2, z + 3); cvt2(A, z + 2, z + 4, z + 5); cvt2(A, z + 3, z + 6, z + 7)
        A(f"buffer_store_dwordx4 {v(z,4)}, v{VL16}, {s(SRD_WS,4)}, s{72 + (u >> 2)} offen offset:{1024*(u&3)}{stf}")

def epilogue_Z1(A, P, opt):
    stf = opt.get("stflags", " sc1")
    S_C1, S_ONE = 62, 78
    aL, bL, csZ1, C0 = 8, 10, 12, 44
    TM = [48 + 2 * i for i in range(8)]
    VL8 = 46
    t0, t1, t2 = 4, 5, 6
    gelu_consts(A, C0, S_C1, S_ONE)
    A(f"v_and_b32 v{t0}, 15, v0")
    A(f"v_lshrrev_b32 v{t1}, 4, v0")
    A(f"s_lshl_b32 s72, s{S_RG}, 7")
    A(f"s_add_u32 s72, s72, {LA1 + 64}")
    A(f"v_lshlrev_b32 v{t0}, 2, v{t0}")
    A(f"v_lshlrev_b32 v{t1}, 4, v{t1}")
    A(f"v_add_u32 v{t2}, s72, v{t0}")
    A(f"v_add_u32 v{t1}, {LCS + 7*64}, v{t1}")
    A(f"v_lshlrev_b32 v{VL8}, 3, v0")
    L = LG(A)
    for T in range(2):
        A(f"ds_read_b32 v{aL+T}, v{t2} offset:{64*T}"); L.issue("a")
        A(f"ds_read_b32 v{bL+T}, v{t2} offset:{64*T+LB1-LA1}"); L.issue("a")
    for u in range(7):
        A(f"ds_read_b128 {v(csZ1+4*u,4)}, v{t1} offset:{64*u}"); L.issue("a")
    A(f"s_lshl_b32 s74, s{S_I}, 3")
    A(f"s_lshl_b32 s75, s{S_RG}, 1")
    A(f"s_add_u32 s74, s74, s75")
    A(f"s_mul_i32 s74, s74, {56*512}")
    A(f"s_mul_i32 s75, s{S_G}, {7*512}")
    A(f"s_add_u32 s74, s74, s75")
    A(f"s_add_u32 s74, s74, {WS_Z1}")
    A(f"s_add_u32 s75, s74, {56*512}")
    L.wait_all()
    tcyc = 0
    for T in range(2):
        pairs = []
        for u in range(7):
            for h in range(2):
                z = zreg(u, T) + 2 * h
                t = TM[tcyc % 8]; tcyc += 1
                pk(A, "mul", t, ('p', csZ1 + 4 * u + 2 * h), ('b', bL + T))
                pk(A, "fma", z, ('p', z), ('b', aL + T), ('p', t))
                pairs.append(z)
        gelu_pairs(A, pairs, TM[:7], C0, S_C1, S_ONE)
        for u in range(7):
            z = zreg(u, T)
            cvt2(A, z, z, z + 1); cvt2(A, z + 1, z + 2, z + 3)
            A(f"buffer_store_dwordx2 {v(z,2)}, v{VL8}, {s(SRD_WS,4)}, s{74 + T} offen offset:{u*512}{stf}")
    stamp(A, 5)

def compute_p1(A, typ, par, opt):
    P = f"p1{typ}c{par}"
    isA = typ == "A"
    A("s_waitcnt lgkmcnt(0)")
    srd(A, SRD_X, P_X, 2048 * 896)
    if isA: srd(A, SRD_W, P_WQKV, 448 * 2688)
    else: srd(A, SRD_W, P_WIN, 448 * 3584)
    srd(A, SRD_WS, P_WS, WS_BYTES)
    srd(A, SRD_DBG, P_DBG, 256)
    A(f"s_and_b32 s{S_RG}, s{S_W}, 3")
    A(f"s_lshr_b32 s{S_J}, s{S_W}, 2")
    A(f"s_lshl_b32 s64, s{S_G}, 1")
    A(f"s_add_u32 s{S_J}, s{S_J}, s64")
    A("v_mov_b32 v7, 0")
    A(f"s_or_b32 s72, s2, s{S_W}")
    A("s_cmp_lg_u32 s72, 0")
    A(f"s_cbranch_scc1 {P}_non")
    A("s_memrealtime s[74:75]")
    A("s_waitcnt lgkmcnt(0)")
    A("s_or_b32 s74, s74, 1")
    A("v_mov_b32 v8, s74"); A("v_mov_b32 v9, s75")
    A("s_mov_b64 exec, 1")
    A(f"buffer_store_dwordx2 v[8:9], v7, {s(SRD_DBG,4)}, 0 offen sc1")
    A("s_mov_b64 exec, -1")
    A.label(f"{P}_non")
    lo = isA or par == 0
    hi = isA or par == 1
    def split(flo, fhi, tagn):
        if isA:
            A(f"s_cmp_ge_u32 s{S_W}, 4")
            A(f"s_cbranch_scc1 {P}_{tagn}h")
            flo()
            A(f"s_branch {P}_{tagn}e")
            A.label(f"{P}_{tagn}h")
            fhi()
            A.label(f"{P}_{tagn}e")
        elif par == 0: flo()
        else: fhi()
    split(lambda: cols_load(A, typ, f"{P}_cl"), lambda: rows_load(A), "ld")
    if lo:
        A(f"s_cmp_lg_u32 s{S_W}, 0")
        A(f"s_cbranch_scc1 {P}_nopoll")
        A(f"s_mov_b32 s{S_PC}, {POLL_MAX}")
        A.label(f"{P}_poll")
        A(f"buffer_load_dwordx2 v[8:9], v7, {s(SRD_DBG,4)}, 0 offen sc1")
        A("s_waitcnt vmcnt(0)")
        A("v_readfirstlane_b32 s74, v8")
        A(f"s_sub_u32 s{S_PC}, s{S_PC}, 1")
        A(f"s_cmp_eq_u32 s{S_PC}, 0")
        A(f"s_cbranch_scc1 {P}_pollx")
        A("s_cmp_eq_u32 s74, 0")
        A(f"s_cbranch_scc1 {P}_poll")
        A.label(f"{P}_pollx")
        A(f"v_mov_b32 v10, {LNON}")
        A("ds_write_b64 v10, v[8:9]")
        A.label(f"{P}_nopoll")
    A("s_waitcnt vmcnt(0)")
    split(lambda: cols_compute(A, typ, f"{P}_cc"), lambda: rows_compute(A), "cp")
    compute_addr(A, typ)
    def hook():
        A(f"v_mov_b32 v6, {LNON}")
        A("ds_read_b64 v[6:7], v6")
        A("s_waitcnt lgkmcnt(0)")
        A(f"v_readfirstlane_b32 s{S_TAG}, v6")
        A(f"v_readfirstlane_b32 s{S_TAG+1}, v7")
        split(lambda: cols_publish(A, typ, f"{P}_cq"), lambda: rows_publish(A), "pb")
    main_loop(A, typ, par, P, hook, opt)
    if isA: epilogue_A(A, P, opt)
    elif par == 0: epilogue_Z2(A, P, opt)
    else: epilogue_Z1(A, P, opt)
    stamp(A, 7)

def stamp_flush12(A, kidx=0):
    if not STAMP["on"]: return
    A("s_waitcnt vmcnt(0)")
    stamp(A, 8)
    A("s_memrealtime s[98:99]")
    A("s_waitcnt lgkmcnt(0)")
    A("v_writelane_b32 v166, s98, 62")
    A(f"s_lshl_b32 s96, s2, 4")
    A(f"s_add_u32 s96, s96, s{S_W}")
    A(f"s_lshl_b32 s96, s96, 8")
    A(f"s_add_u32 s96, s96, {WS_DBG + kidx*0x100000}")
    A("v_lshlrev_b32 v167, 2, v0")
    A(f"buffer_store_dword v166, v167, {s(SRD_WS,4)}, s96 offen")

def gen_k1(opt, kidx=0):
    A = Asm()
    prologue(A, "k1_end")
    stamp_init(A)
    wg_map(A)
    A(f"s_cmp_ge_u32 s{S_W}, 8")
    A("s_cbranch_scc1 k1_load")
    A(f"s_cmp_ge_u32 s{S_C}, 8")
    A("s_cbranch_scc1 k1_cB")
    compute_p1(A, "A", 0, opt)
    stamp_flush12(A, kidx)
    A("s_endpgm")
    A.label("k1_cB")
    A(f"s_cmp_ge_u32 s{S_W}, 4")
    A("s_cbranch_scc1 k1_cB1")
    compute_p1(A, "B", 0, opt)
    stamp_flush12(A, kidx)
    A("s_endpgm")
    A.label("k1_cB1")
    compute_p1(A, "B", 1, opt)
    stamp_flush12(A, kidx)
    A("s_endpgm")
    A.label("k1_load")
    for typ in "AB":
        if typ == "A":
            A(f"s_cmp_ge_u32 s{S_C}, 8")
            A("s_cbranch_scc1 k1_lB")
        else:
            A.label("k1_lB")
        for ell in range(4):
            if ell < 3:
                A(f"s_cmp_lg_u32 s{S_W}, {8+ell}")
                A(f"s_cbranch_scc1 k1_l{typ}{ell+1}")
            loader_p1(A, typ, ell, opt)
            stamp_flush12(A, kidx)
            A("s_endpgm")
            if ell < 3: A.label(f"k1_l{typ}{ell+1}")
    A.label("k1_end")
    A("s_endpgm")
    return ("k1_kernel", A.text(), 256, 768, F_LDS, 168)
```

```python
from asmlib import *
from lay import *
import math

LOG2E = 1.4426950408889634
def f2u(x):
    import struct
    return struct.unpack("<I", struct.pack("<f", x))[0]
def fhex(x): return hex(f2u(x))

class Lgkm:
    def __init__(self, A):
        self.A = A; self.p = []
    def issue(self, tag):
        self.p.append(tag); assert len(self.p) <= 15, ("lgkm overflow", self.p)
    def wait(self, tag):
        idx = [i for i, t in enumerate(self.p) if t == tag]
        if not idx: return
        idx = idx[-1]
        n = len(self.p) - 1 - idx
        self.A(f"s_waitcnt lgkmcnt({n})")
        self.p = self.p[idx + 1:]
    def wait_all(self):
        self.A("s_waitcnt lgkmcnt(0)"); self.p = []

def pk(A, op, dst, *srcs, neg=None):
    ops = []; sel = []; selhi = []
    for k, r in srcs:
        if k == 'p':
            assert r % 2 == 0, r
            ops.append(v(r, 2)); sel.append(0); selhi.append(1)
        elif k == 'b':
            ops.append(v(r & ~1, 2)); sel.append(r & 1); selhi.append(r & 1)
        elif k == 's':
            assert r % 2 == 0
            ops.append(s(r, 2)); sel.append(0); selhi.append(1)
        elif k == 'sb':
            ops.append(s(r & ~1, 2)); sel.append(r & 1); selhi.append(r & 1)
    assert dst % 2 == 0
    t = f"v_pk_{op}_f32 {v(dst,2)}, " + ", ".join(ops)
    if any(sel): t += " op_sel:[" + ",".join(map(str, sel)) + "]"
    if not all(selhi): t += " op_sel_hi:[" + ",".join(map(str, selhi)) + "]"
    if neg and any(neg):
        t += " neg_lo:[" + ",".join(map(str, neg)) + "] neg_hi:[" + ",".join(map(str, neg)) + "]"
    A(t)

def mfma(A, d, a_, b_, c):
    cs = "0" if c is None else v(c, 4)
    A(f"v_mfma_f32_16x16x32_bf16 {v(d,4)}, {v(a_,4)}, {v(b_,4)}, {cs}")

def magic_div(d, nmax, shift=16):
    m = ((1 << shift) + d - 1) // d
    for n in range(nmax):
        assert (n * m) >> shift == n // d, (d, n)
    assert nmax * m < (1 << 32)
    return m

def allreduce_rows(A, op, regs, tmp):
    for r, t in zip(regs, tmp): A(f"v_mov_b32 v{t}, v{r}")
    for r, t in zip(regs, tmp): A(f"v_permlane16_swap_b32 v{r}, v{t}")
    for r, t in zip(regs, tmp): A(f"v_{op}_f32 v{r}, v{r}, v{t}")
    for r, t in zip(regs, tmp): A(f"v_mov_b32 v{t}, v{r}")
    for r, t in zip(regs, tmp): A(f"v_permlane32_swap_b32 v{r}, v{t}")
    for r, t in zip(regs, tmp): A(f"v_{op}_f32 v{r}, v{r}, v{t}")

def dpp_row_allreduce(A, regs, steps=(8, 4, 2, 1)):
    for st in steps:
        for r in regs:
            A(f"v_add_f32_dpp v{r}, v{r}, v{r} row_ror:{st} row_mask:0xf bank_mask:0xf")

def prologue(A, end, nwg=256):
    A(f"s_cmp_ge_u32 s2, {nwg}")
    A(f"s_cbranch_scc1 {end}")
    A("s_load_dwordx16 s[8:23], s[0:1], 0")
    A("s_load_dwordx4 s[24:27], s[0:1], 64")
    A("s_load_dwordx2 s[28:29], s[0:1], 80")
    A("v_lshrrev_b32 v1, 6, v0")
    A("v_and_b32 v0, 63, v0")
    A("v_readfirstlane_b32 s3, v1")

P_X, P_WQKV, P_WO, P_WIN, P_WSP, P_BSP, P_WOUT, P_OUT, P_DBG, P_WS = 8, 10, 12, 16, 18, 20, 22, 24, 26, 28
WS_BYTES = 0x1600000

def finish(kernels, path, note=""):
    import hazard
    txt = note
    for (name, body, grid, block, lds, vg) in kernels:
        txt += f"; @launch kernel={name} grid=({grid},1,1) block=({block},1,1) lds={lds}\n"
    txt += '.amdgcn_target "amdgcn-amd-amdhsa--gfx950"\n.text\n'
    for (name, body, grid, block, lds, vg) in kernels:
        txt += kernel_header(name) + hazard.fix(body, True) + "\n"
    txt += '.section .rodata,"a"\n'
    for (name, body, grid, block, lds, vg) in kernels:
        txt += kernel_desc(name, vg)
    open(path, "w").write(txt)
    return txt

def csel(A, dst, a_, b_):
    A(f"s_mov_b32 s{dst}, {b_}")
    A(f"s_cselect_b32 s{dst}, {a_}, s{dst}")

STAMP = {"on": False, "v": 250}
def stamp(A, idx, wait=True, sreg=96):
    if not STAMP["on"]: return
    A(f"s_memtime s[{sreg}:{sreg+1}]")
    if wait:
        A("s_waitcnt lgkmcnt(0)")
        A(f"v_writelane_b32 v{STAMP['v']}, s{sreg}, {idx}")
def stamp_commit(A, idx, sreg=96):
    if STAMP["on"]: A(f"v_writelane_b32 v{STAMP['v']}, s{sreg}, {idx}")
def stamp_init(A):
    if not STAMP["on"]: return
    A(f"v_mov_b32 v{STAMP['v']}, 0")
    A("s_memrealtime s[98:99]")
    A("s_memtime s[96:97]")
    A("s_waitcnt lgkmcnt(0)")
    A(f"v_writelane_b32 v{STAMP['v']}, s98, 63")
    A(f"v_writelane_b32 v{STAMP['v']}, s96, 0")
def stamp_flush(A, srd_ws, s_wave, kidx=0):
    if not STAMP["on"]: return
    A("s_memrealtime s[98:99]")
    A("s_waitcnt lgkmcnt(0)")
    A("v_writelane_b32 v250, s98, 62")
    A(f"s_lshl_b32 s96, s2, 3")
    A(f"s_add_u32 s96, s96, s{s_wave}")
    A(f"s_lshl_b32 s96, s96, 8")
    A(f"s_add_u32 s96, s96, {WS_DBG + kidx*0x80000}")
    A("v_lshlrev_b32 v251, 2, v0")
    A(f"buffer_store_dword v250, v251, {s(srd_ws,4)}, s96 offen")
```

```python
from gl import *
import g_k2, g_k3, g_p1
finish([g_p1.gen_k1({}), g_k2.gen_k2({}), g_k3.gen_k3({})], "n123.s")
finish([g_p1.gen_k1({})], "n1.s")
STAMP["on"] = True; STAMP["v"] = 166
finish([g_p1.gen_k1({})], "n1_st.s")
```

```python
from gl import *

LX, LW = 0, 55296
XSA, XSB, WSA, WSB = 18432, 16384, 24576, 28672
LA1 = 153600; LB1 = LA1 + 576; LCS = 154752; LNON = 155648; LSC = 155712
F_LDS = 163840
POLL_MAX = 40000
S_W, S_I, S_C, S_G, S_PC, S_J, S_RG, S_LC, S_SL = 3, 52, 53, 54, 55, 56, 57, 58, 59
S_TAG = 60
T4 = (64, 65, 66, 67)
SRD_X, SRD_W, SRD_WS, SRD_DBG = 32, 36, 44, 48
BIG = 0x7ff00000

class LG(Lgkm):
    def issue(self, tag): self.p.append(tag)
    def wait(self, tag):
        idx = [i for i, t in enumerate(self.p) if t == tag]
        if not idx: return
        idx = idx[-1]
        n = min(len(self.p) - 1 - idx, 15)
        self.A(f"s_waitcnt lgkmcnt({n})")
        self.p = self.p[len(self.p) - n:] if n else []

def cvt2(A, d, lo, hi): A(f"v_cvt_pk_bf16_f32 v{d}, v{lo}, v{hi}")
def lane_mask(fn):
    m = 0
    for l in range(64):
        if fn(l >> 4, l & 15): m |= 1 << l
    return m
def smask(A, sr, m):
    A(f"s_mov_b32 s{sr}, {hex(m & 0xffffffff)}")
    A(f"s_mov_b32 s{sr+1}, {hex(m >> 32)}")

def wg_map(A):
    t0 = 64
    A(f"s_lshr_b32 s{t0}, s2, 3")
    A(f"s_and_b32 s{S_C}, s2, 3")
    A(f"s_lshl_b32 s{S_C}, s{S_C}, 1")
    A(f"s_and_b32 s{S_I}, s{t0}, 1")
    A(f"s_add_u32 s{S_G}, s{S_C}, s{S_I}")
    A(f"s_bfe_u32 s{S_I}, s{t0}, 0x10001")
    A(f"s_lshl_b32 s{S_I}, s{S_I}, 3")
    A(f"s_add_u32 s{S_C}, s{S_G}, s{S_I}")
    A(f"s_lshr_b32 s{t0}, s{t0}, 2")
    A(f"s_bfe_u32 s{S_I}, s2, 0x10002")
    A(f"s_lshl_b32 s{S_I}, s{S_I}, 3")
    A(f"s_add_u32 s{S_I}, s{S_I}, s{t0}")

PRB = 56
def rows_load(A):
    R = PRB; t0 = 64; va, vb = R + 24, R + 25
    A(f"s_lshl_b32 s{t0}, s{S_I}, 4")
    A(f"s_add_u32 s{t0}, s{t0}, s{S_C}")
    A(f"s_lshl_b32 s{t0}, s{t0}, 2")
    A(f"s_add_u32 s{t0}, s{t0}, s{S_RG}")
    A(f"s_mul_i32 s{t0}, s{t0}, 1792")
    A(f"v_lshlrev_b32 v{va}, 4, v0")
    A(f"v_mov_b32 v{vb}, {hex(BIG)}")
    A(f"v_cmp_gt_u32 vcc, 56, v0")
    A(f"v_cndmask_b32 v{va}, v{vb}, v{va}, vcc")
    A(f"buffer_load_dwordx4 {v(R,4)}, v{va}, {s(SRD_X,4)}, s{t0} offen")
    A(f"buffer_load_dwordx4 {v(R+4,4)}, v{va}, {s(SRD_X,4)}, s{t0} offen offset:896")

def rows_compute(A):
    R = PRB; ones = R + 24
    A(f"v_mov_b32 v{ones}, 0x3f803f80")
    S_ = [R + 30, R + 31, R + 32, R + 33]
    for k in range(4): A(f"v_mov_b32 v{S_[k]}, 0")
    for d in range(4):
        for rr in range(2):
            x = R + 4 * rr + d
            A(f"v_dot2_f32_bf16 v{S_[2*rr]}, v{x}, v{ones}, v{S_[2*rr]}")
            A(f"v_dot2_f32_bf16 v{S_[2*rr+1]}, v{x}, v{x}, v{S_[2*rr+1]}")
    dpp_row_allreduce(A, S_)
    allreduce_rows(A, "add", S_, [R + 34, R + 35, R + 36, R + 37])
    A(f"v_cmp_eq_u32 vcc, 1, v0")
    A(f"v_cndmask_b32 v{S_[0]}, v{S_[0]}, v{S_[2]}, vcc")
    A(f"v_cndmask_b32 v{S_[1]}, v{S_[1]}, v{S_[3]}, vcc")
    A(f"v_mul_f32 v{S_[0]}, {fhex(1/448)}, v{S_[0]}")
    A(f"v_mul_f32 v{S_[1]}, {fhex(1/448)}, v{S_[1]}")
    A(f"v_fma_f32 v{S_[1]}, -v{S_[0]}, v{S_[0]}, v{S_[1]}")
    A(f"v_max_f32 v{S_[1]}, 0, v{S_[1]}")
    A(f"v_add_f32 v{S_[1]}, {fhex(1e-5)}, v{S_[1]}")
    A(f"v_rsq_f32 v{R+26}, v{S_[1]}")
    A(f"v_mul_f32 v{R+27}, v{S_[0]}, v{R+26}")
    A(f"v_sub_f32 v{R+27}, 0, v{R+27}")

def rows_publish(A):
    R = PRB; t0 = 64; G = R + 30
    A(f"s_lshl_b32 s{t0}, s{S_I}, 4")
    A(f"s_add_u32 s{t0}, s{t0}, s{S_C}")
    A(f"s_lshl_b32 s{t0}, s{t0}, 2")
    A(f"s_add_u32 s{t0}, s{t0}, s{S_RG}")
    A(f"s_lshl_b32 s{t0}, s{t0}, 5")
    A(f"s_add_u32 s{t0}, s{t0}, {WS_ST1}")
    A(f"v_mov_b32 v{G}, v{R+26}")
    A(f"v_mov_b32 v{G+1}, v{R+27}")
    A(f"v_mov_b32 v{G+2}, s{S_TAG}")
    A(f"v_mov_b32 v{G+3}, s{S_TAG+1}")
    A(f"v_lshlrev_b32 v{R+34}, 4, v0")
    A(f"s_mov_b64 exec, 3")
    A(f"buffer_store_dwordx4 {v(G,4)}, v{R+34}, {s(SRD_WS,4)}, s{t0} offen sc1")
    A(f"s_mov_b64 exec, -1")

def cols_load(A, typ, skip):
    R = PRB; t0, t1, t2, t3 = T4; va, vb = R + 24, R + 25
    nt = 12 if typ == "A" else 14
    A(f"s_cmp_ge_u32 s{S_I}, {nt}")
    A(f"s_cbranch_scc1 {skip}")
    if typ == "A":
        stride = 2688
        A(f"s_lshr_b32 s{t0}, s{S_I}, 2")
        A(f"s_mul_i32 s{t0}, s{t0}, 896")
        A(f"s_mul_i32 s{t1}, s{S_G}, 112")
        A(f"s_add_u32 s{t0}, s{t0}, s{t1}")
        A(f"s_bfe_u32 s{t1}, s{S_I}, 0x10001")
        A(f"s_mul_i32 s{t1}, s{t1}, 56")
        A(f"s_add_u32 s{t0}, s{t0}, s{t1}")
        A(f"s_and_b32 s{t1}, s{S_I}, 1")
        A(f"s_lshl_b32 s{t1}, s{t1}, 5")
        A(f"s_add_u32 s{t0}, s{t0}, s{t1}")
    else:
        stride = 3584
        A(f"s_mul_i32 s{t0}, s{S_G}, 224")
        A(f"s_lshl_b32 s{t1}, s{S_I}, 5")
        A(f"s_add_u32 s{t0}, s{t0}, s{t1}")
        A(f"s_cmp_lt_u32 s{S_I}, 7")
        csel(A, t1, 1792, -224)
        A(f"s_add_u32 s{t0}, s{t0}, s{t1}")
    A(f"s_mul_i32 s{t2}, s{S_RG}, {112*stride}")
    A(f"s_add_u32 s{t0}, s{t0}, s{t2}")
    A(f"v_lshrrev_b32 v{va}, 1, v0")
    A(f"v_mul_u32_u24 v{va}, {stride}, v{va}")
    A(f"v_and_b32 v{vb}, 1, v0")
    A(f"v_lshl_add_u32 v{va}, v{vb}, 4, v{va}")
    for m in range(4):
        if m == 3:
            A(f"v_mov_b32 v{vb}, {hex(BIG)}")
            A(f"v_cmp_gt_u32 vcc, 32, v0")
            A(f"v_cndmask_b32 v{va}, v{vb}, v{va}, vcc")
        A(f"buffer_load_dwordx4 {v(R+8+4*m,4)}, v{va}, {s(SRD_W,4)}, s{t0} offen")
        if m < 3: A(f"s_add_u32 s{t0}, s{t0}, {32*stride}")
    A.label(skip)

def cols_compute(A, typ, skip):
    R = PRB
    nt = 12 if typ == "A" else 14
    A(f"s_cmp_ge_u32 s{S_I}, {nt}")
    A(f"s_cbranch_scc1 {skip}")
    lo, hi = R + 0, R + 1
    A(f"v_mov_b32 v{lo}, 0x00003f80")
    A(f"v_mov_b32 v{hi}, 0x3f800000")
    acc = [R + 30 + k for k in range(8)]
    for k in range(8): A(f"v_mov_b32 v{acc[k]}, 0")
    for m in range(4):
        for d in range(4):
            x = R + 8 + 4 * m + d
            A(f"v_dot2_f32_bf16 v{acc[2*d]}, v{x}, v{lo}, v{acc[2*d]}")
            A(f"v_dot2_f32_bf16 v{acc[2*d+1]}, v{x}, v{hi}, v{acc[2*d+1]}")
    dpp_row_allreduce(A, acc, steps=(8, 4, 2))
    allreduce_rows(A, "add", acc, [R + 2 + k for k in range(8)])
    A(f"v_lshrrev_b32 v{R+2}, 1, v0")
    A(f"v_mov_b32 v{R+28}, v{acc[0]}")
    A(f"v_mov_b32 v{R+29}, v{acc[1]}")
    for d in range(1, 4):
        A(f"v_cmp_eq_u32 vcc, {d}, v{R+2}")
        A(f"v_cndmask_b32 v{R+28}, v{R+28}, v{acc[2*d]}, vcc")
        A(f"v_cndmask_b32 v{R+29}, v{R+29}, v{acc[2*d+1]}, vcc")
    A.label(skip)

def cols_publish(A, typ, skip):
    R = PRB; t0 = 64
    nt = 12 if typ == "A" else 14
    A(f"s_cmp_ge_u32 s{S_I}, {nt}")
    A(f"s_cbranch_scc1 {skip}")
    A(f"s_mul_i32 s{t0}, s{S_C}, 14")
    A(f"s_add_u32 s{t0}, s{t0}, s{S_I}")
    A(f"s_lshl_b32 s{t0}, s{t0}, 2")
    A(f"s_add_u32 s{t0}, s{t0}, s{S_RG}")
    A(f"s_lshl_b32 s{t0}, s{t0}, 7")
    A(f"s_add_u32 s{t0}, s{t0}, {WS_CS}")
    G2 = R + 36
    A(f"v_mov_b32 v{G2}, v{R+28}")
    A(f"v_mov_b32 v{G2+1}, v{R+29}")
    A(f"v_mov_b32 v{G2+2}, s{S_TAG}")
    A(f"v_mov_b32 v{G2+3}, s{S_TAG+1}")
    A(f"v_and_b32 v{R+35}, 1, v0")
    A(f"v_lshrrev_b32 v{R+34}, 1, v0")
    A(f"v_lshl_add_u32 v{R+34}, v{R+35}, 2, v{R+34}")
    A(f"v_lshlrev_b32 v{R+34}, 4, v{R+34}")
    A(f"s_mov_b64 exec, 0xff")
    A(f"buffer_store_dwordx4 {v(G2,4)}, v{R+34}, {s(SRD_WS,4)}, s{t0} offen sc1")
    A(f"s_mov_b64 exec, -1")
    A.label(skip)

def kperm16(A, rho, out, t):
    A(f"v_and_b32 v{out}, 3, v{rho}")
    A(f"v_lshrrev_b32 v{t}, 2, v{rho}")
    A(f"v_lshl_add_u32 v{out}, v{t}, 3, v{out}")

def voff_wq(A, beta, dst, t, s_col):
    n, rho, c, k = t
    A(f"v_add_u32 v{n}, {64*beta}, v0")
    m = magic_div(24, 384)
    A(f"v_mul_u32_u24 v{rho}, {m}, v{n}")
    A(f"v_lshrrev_b32 v{rho}, 16, v{rho}")
    A(f"v_mul_u32_u24 v{c}, 24, v{rho}")
    A(f"v_sub_u32 v{c}, v{n}, v{c}")
    kperm16(A, rho, k, n)
    A(f"v_mul_u32_u24 v{dst}, 2688, v{k}")
    A(f"v_bfe_u32 v{k}, v{rho}, 1, 2")
    A(f"v_lshrrev_b32 v{n}, 1, v{c}")
    A(f"v_xor_b32 v{n}, v{n}, v{k}")
    A(f"v_lshrrev_b32 v{k}, 2, v{n}")
    A(f"v_mul_u32_u24 v{k}, 896, v{k}")
    A(f"v_add_u32 v{dst}, v{dst}, v{k}")
    A(f"v_bfe_u32 v{k}, v{n}, 1, 1")
    A(f"v_mul_u32_u24 v{k}, 56, v{k}")
    A(f"v_add_u32 v{dst}, v{dst}, v{k}")
    A(f"v_and_b32 v{n}, 1, v{n}")
    A(f"v_lshl_add_u32 v{dst}, v{n}, 5, v{dst}")
    A(f"v_and_b32 v{c}, 1, v{c}")
    A(f"v_lshl_add_u32 v{dst}, v{c}, 4, v{dst}")
    A(f"v_add_u32 v{dst}, s{s_col}, v{dst}")

def voff_wz(A, beta, dst, t, s_col):
    n, rho, c, k = t
    A(f"v_add_u32 v{n}, {64*beta}, v0")
    m = magic_div(28, 448)
    A(f"v_mul_u32_u24 v{rho}, {m}, v{n}")
    A(f"v_lshrrev_b32 v{rho}, 16, v{rho}")
    A(f"v_mul_u32_u24 v{c}, 28, v{rho}")
    A(f"v_sub_u32 v{c}, v{n}, v{c}")
    kperm16(A, rho, k, n)
    A(f"v_mul_u32_u24 v{dst}, 3584, v{k}")
    A(f"v_bfe_u32 v{k}, v{rho}, 2, 1")
    A(f"v_lshrrev_b32 v{n}, 1, v{c}")
    A(f"v_xor_b32 v{n}, v{n}, v{k}")
    A(f"v_lshl_add_u32 v{dst}, v{n}, 5, v{dst}")
    A(f"v_mov_b32 v{k}, 1792")
    A(f"v_mov_b32 v{rho}, -224")
    A(f"v_cmp_gt_u32 vcc, 7, v{n}")
    A(f"v_cndmask_b32 v{k}, v{rho}, v{k}, vcc")
    A(f"v_add_u32 v{dst}, v{dst}, v{k}")
    A(f"v_and_b32 v{c}, 1, v{c}")
    A(f"v_lshl_add_u32 v{dst}, v{c}, 4, v{dst}")
    A(f"v_add_u32 v{dst}, s{s_col}, v{dst}")

DK = [0, 4, 32, 36]
def loader_p1(A, typ, ell, opt):
    P = f"p1{typ}l{ell}"
    isA = typ == "A"
    XS, WS_ = (XSA, WSA) if isA else (XSB, WSB)
    stride = 2688 if isA else 3584
    NB = 6 if isA else 7
    voff = voff_wq if isA else voff_wz
    t = (20, 21, 22, 23)
    A(f"s_mul_i32 s68, s{S_G}, {112 if isA else 224}")
    pieces = []
    wb = {}
    nxt = [8]
    def base(b):
        if b not in wb:
            wb[b] = nxt[0]; nxt[0] += 1
            voff(A, b, wb[b], t, 68)
        return wb[b]
    def wp(b, ms):
        r = base(b)
        for m in ms: pieces.append(("w", r, DK[m] * stride, (NB * m + b) * 1024))
    if ell < 2:
        A(f"v_lshrrev_b32 v20, 4, v0")
        A(f"v_add_u32 v20, {4*ell}, v20")
        A(f"v_and_b32 v21, 7, v0")
        A(f"v_xor_b32 v20, v20, v21")
        A(f"v_and_b32 v20, 7, v20")
        A(f"v_lshlrev_b32 v20, 4, v20")
        A(f"v_lshrrev_b32 v21, 3, v0")
        A(f"s_lshl_b32 s72, s{S_I}, 7")
        A(f"s_add_u32 s72, s72, {8*ell}")
        A(f"v_add_u32 v21, s72, v21")
        A(f"v_mul_u32_u24 v9, 896, v21")
        A(f"v_add_u32 v9, v9, v20")
        nxt[0] = 10
        if isA:
            A(f"v_subrev_u32 v21, 16, v21")
            A(f"v_max_i32 v21, 0, v21")
            A(f"v_mul_u32_u24 v8, 896, v21")
            A(f"v_add_u32 v8, v8, v20")
            for m in range(9):
                p = ell + 2 * m
                pieces.append(("x", 8 if m == 0 else 9, 0 if m == 0 else (m - 1) * 14336, p * 1024))
            wp(ell, (0, 1))
        else:
            for m in range(8):
                pieces.append(("x", 9, m * 14336, (ell + 2 * m) * 1024))
            wp(ell, (0, 1, 2))
    elif isA:
        if ell == 2: wp(2, range(4)); wp(3, range(4)); wp(0, (2, 3))
        else: wp(4, range(4)); wp(5, range(4)); wp(1, (2, 3))
    else:
        if ell == 2: wp(2, range(4)); wp(3, range(4)); wp(0, (3,)); wp(1, (3,)); wp(6, (0,))
        else: wp(4, range(4)); wp(5, range(4)); wp(6, (1, 2, 3))
    npc = len(pieces)
    A("s_waitcnt lgkmcnt(0)")
    srd(A, SRD_X, P_X, 2048 * 896)
    if isA: srd(A, SRD_W, P_WQKV, 448 * 2688)
    else: srd(A, SRD_W, P_WIN, 448 * 3584)
    srd(A, SRD_WS, P_WS, WS_BYTES)
    def issue(S_):
        if opt.get("nodma") and S_ >= 3: return
        sl = S_ % 3
        for kind, vr, so, lo in pieces:
            b, ss, step, sr = (LX, XS, 128, SRD_X) if kind == "x" else (LW, WS_, 64 * stride, SRD_W)
            A(f"s_mov_b32 m0, {b + sl * ss + lo}")
            A(f"s_mov_b32 s73, {S_ * step + so}")
            A(f"buffer_load_dwordx4 v{vr}, {s(sr,4)}, s73 offen lds")
    nt = 12 if isA else 14
    def table_loads():
        if ell < 3:
            A(f"s_lshl_b32 s72, s{S_I}, 7")
            A(f"s_add_u32 s72, s72, {64*ell}")
            A(f"v_add_u32 v24, s72, v0")
            A(f"v_subrev_u32 v24, 16, v24")
            A(f"v_max_i32 v24, 0, v24")
            A(f"v_lshlrev_b32 v24, 4, v24")
            if ell == 2:
                A(f"s_lshl_b32 s72, s{S_I}, 7")
                A(f"s_add_u32 s72, s72, 127")
                A(f"s_lshl_b32 s72, s72, 4")
                A(f"v_min_u32 v24, s72, v24")
            A(f"buffer_load_dwordx4 v[28:31], v24, {s(SRD_WS,4)}, 0 offen sc1")
        if ell >= 2:
            A(f"v_add_u32 v25, {64*(ell-2)}, v0")
            A(f"v_lshrrev_b32 v26, 3, v25")
            A(f"v_min_u32 v26, {nt-1}, v26")
            A(f"s_mul_i32 s72, s{S_C}, 14")
            A(f"v_add_u32 v26, s72, v26")
            A(f"v_lshlrev_b32 v26, 9, v26")
            A(f"v_and_b32 v25, 7, v25")
            A(f"v_lshl_add_u32 v26, v25, 4, v26")
            A(f"s_mov_b32 s72, {WS_CS}")
            for q in range(4):
                A(f"buffer_load_dwordx4 {v(32+4*q,4)}, v26, {s(SRD_WS,4)}, s72 offen offset:{128*q} sc1")
    def table_check(fail):
        regs = ([28] if ell < 3 else []) + ([32, 36, 40, 44] if ell >= 2 else [])
        first = True
        for r in regs:
            A(f"v_cmp_eq_u32 vcc, s{S_TAG}, v{r+2}")
            A(f"v_cmp_eq_u32 s[74:75], s{S_TAG+1}, v{r+3}")
            A(f"s_and_b64 vcc, vcc, s[74:75]")
            if first: A(f"s_mov_b64 s[76:77], vcc")
            else: A(f"s_and_b64 s[76:77], s[76:77], vcc")
            first = False
        A(f"s_cmp_eq_u64 s[76:77], -1")
        A(f"s_cbranch_scc0 {fail}")
    def table_write():
        if ell < 3:
            A(f"v_lshlrev_b32 v24, 2, v0")
            A(f"v_add_u32 v24, {LA1 + 256*ell}, v24")
            if ell == 2: A("s_mov_b64 exec, 0xffff")
            A(f"ds_write_b32 v24, v28")
            A(f"ds_write_b32 v24, v29 offset:{LB1-LA1}")
            if ell == 2: A("s_mov_b64 exec, -1")
        if ell >= 2:
            pk(A, "add", 32, ('p', 32), ('p', 36))
            pk(A, "add", 40, ('p', 40), ('p', 44))
            pk(A, "add", 32, ('p', 32), ('p', 40))
            A(f"v_lshlrev_b32 v24, 3, v0")
            A(f"v_add_u32 v24, {LCS + 512*(ell-2)}, v24")
            if ell == 3: A(f"s_mov_b32 exec_hi, 0xffff")
            A(f"ds_write_b64 v24, v[32:33]")
            if ell == 3: A("s_mov_b64 exec, -1")
    TL = opt.get("tl", 4)
    stamp(A, 1)
    issue(0); issue(1)
    stamp(A, 2)
    A(f"s_waitcnt vmcnt({npc})")
    stamp(A, 3)
    A("s_barrier")
    issue(2)
    A(f"v_mov_b32 v24, {LNON}")
    A("ds_read_b64 v[26:27], v24")
    A("s_waitcnt lgkmcnt(0)")
    A(f"v_readfirstlane_b32 s{S_TAG}, v26")
    A(f"v_readfirstlane_b32 s{S_TAG+1}, v27")
    A(f"s_mov_b32 s{S_PC}, {POLL_MAX}")
    for n in range(1, 7):
        if n == TL + 1:
            A("s_waitcnt vmcnt(0)" if n + 1 > 6 or True else "")
            table_check(f"{P}_retry")
            A.label(f"{P}_tok")
            table_write()
            A("s_waitcnt lgkmcnt(0)")
        else:
            A(f"s_waitcnt vmcnt({npc if n + 1 <= 6 else 0})")
        stamp(A, 3 + n)
        A("s_barrier")
        if n == TL: table_loads()
        if n + 2 <= 6: issue(n + 2)
    A("s_barrier")
    stamp(A, 10)
    A(f"s_branch {P}_done")
    A.label(f"{P}_retry")
    A(f"s_sub_u32 s{S_PC}, s{S_PC}, 1")
    A(f"s_cmp_eq_u32 s{S_PC}, 0")
    A(f"s_cbranch_scc1 {P}_tok")
    table_loads()
    A("s_waitcnt vmcnt(0)")
    table_check(f"{P}_retry")
    A(f"s_branch {P}_tok")
    A.label(f"{P}_done")

VXA0, VXA1, VW0, VW1 = 2, 3, 4, 5
XF, WR, ACC = 8, 32, 96
def qreg(dt, T): return ACC + 4 * (2 * dt + T)
def kreg(dt, tau): return ACC + 16 + 4 * (3 * dt + tau)
def vreg(dt, tau): return ACC + 40 + 4 * (3 * dt + tau)
def zreg(n, T): return ACC + 4 * (2 * n + T)
def b_tiles(par):
    return [('z2' if par == 0 else 'z1', u) for u in range(7)]

def compute_addr(A, typ):
    isA = typ == "A"
    A("v_and_b32 v8, 15, v0")
    A("v_lshrrev_b32 v9, 4, v0")
    A("v_lshrrev_b32 v10, 1, v8")
    A("v_xor_b32 v10, v10, v9")
    A("v_lshlrev_b32 v10, 4, v10")
    A("v_lshl_add_u32 v10, v8, 7, v10")
    A(f"s_lshl_b32 s72, s{S_RG}, 12")
    A(f"v_add_u32 v{VXA0}, s72, v10")
    A(f"v_xor_b32 v{VXA1}, 64, v{VXA0}")
    A("v_lshrrev_b32 v10, 2, v8")
    A("v_lshl_add_u32 v10, v9, 2, v10")
    A("v_and_b32 v11, 3, v8")
    A("v_lshlrev_b32 v11, 3, v11")
    A(f"v_mul_u32_u24 v12, {384 if isA else 448}, v10")
    A(f"v_add_u32 v12, v12, v11")
    A(f"v_add_u32 v12, {LW}, v12")
    if isA:
        A("v_and_b32 v11, 1, v9")
        A("v_lshlrev_b32 v11, 1, v11")
        A("v_lshrrev_b32 v13, 3, v8")
        A("v_add_u32 v11, v11, v13")
        A(f"s_lshr_b32 s72, s{S_W}, 2")
        A(f"s_lshl_b32 s72, s72, 1")
        A(f"v_xor_b32 v11, s72, v11")
        A(f"v_lshl_add_u32 v{VW0}, v11, 5, v12")
        A(f"v_xor_b32 v11, 1, v11")
        A(f"v_lshl_add_u32 v{VW1}, v11, 5, v12")
    else:
        A("v_and_b32 v11, 1, v9")
        A(f"v_lshl_add_u32 v{VW0}, v11, 5, v12")
        A(f"v_xor_b32 v11, 1, v11")
        A(f"v_lshl_add_u32 v{VW1}, v11, 5, v12")

def main_loop(A, typ, par, P, hook0, opt={}):
    isA = typ == "A"
    XS, WS_ = (XSA, WSA) if isA else (XSB, WSB)
    stride = 384 if isA else 448
    NX = 3 if isA else 2
    F = 6 if isA else 7
    fs = 2
    L = LG(A)
    if isA:
        tl = [(sec, dt) for sec in range(3) for dt in range(2)]
        def waddr(f):
            sec, dt = tl[f]; return (VW1 if dt else VW0), sec * 128
    else:
        tl = b_tiles(par)
        def waddr(f):
            kind, u = tl[f]; t = u if kind == 'z2' else 7 + u
            return (VW1 if t & 1 else VW0), (t >> 1) * 64
    def rdX(kk):
        if opt.get("nords"): return
        for tau in range(NX):
            A(f"ds_read_b128 {v(XF + 12*kk + 4*tau, 4)}, v{VXA1 if kk else VXA0} offset:{LX + tau*2048}")
            L.issue(("x", kk))
    def rdW(f, kk):
        if opt.get("nords"): return
        ad, off = waddr(f); r = WR + 4 * f
        for sec in range(2):
            A(f"ds_read_b64_tr_b16 {v(r + 2*sec, 2)}, v{ad} offset:{off + (32*kk + 16*sec) * stride}")
            L.issue(("w", f))
    def mm(f, kk): _mm(A, f, kk)
    def _mm(A, f, kk):
        if opt.get("nomm"): return
        r = WR + 4 * f; xb = XF + 12 * kk
        if isA:
            sec, dt = tl[f]
            if sec == 0:
                for T in range(2): mfma(A, qreg(dt, T), r, xb + 4 * (T + 1), qreg(dt, T))
            elif sec == 1:
                for tau in range(3): mfma(A, kreg(dt, tau), r, xb + 4 * tau, kreg(dt, tau))
            else:
                for tau in range(3): mfma(A, vreg(dt, tau), xb + 4 * tau, r, vreg(dt, tau))
        else:
            kind, u = tl[f]
            for T in range(2):
                if kind == 'z2': mfma(A, zreg(f, T), xb + 4 * T, r, zreg(f, T))
                else: mfma(A, zreg(f, T), r, xb + 4 * T, zreg(f, T))
    def rd_items_x():
        return [] if opt.get("nords") else [('r', f"ds_read_b128 {v(XF + 4*tau, 4)}, v{VXA0} offset:{LX + tau*2048}", ("x", 0)) for tau in range(NX)]
    def rd_items_w(f):
        if opt.get("nords"): return []
        ad, off = waddr(f); r = WR + 4 * f
        return [('r', f"ds_read_b64_tr_b16 {v(r + 2*sec, 2)}, v{ad} offset:{off + 16*sec*stride}", ("w", f)) for sec in range(2)]
    rds = rd_items_x()
    for f in range(fs + 1): rds += rd_items_w(f)
    tailseq = []
    tm = []
    for f in range(fs + 1, F):
        lines = []
        _mm(lambda s_: lines.append(s_), f, 1)
        tm.append((f, lines))
    nm = sum(len(x[1]) for x in tm)
    per = 2
    for f, lines in tm:
        for ln in lines:
            tailseq.append(('m', ln))
            for _ in range(per):
                if rds: tailseq.append(rds.pop(0))
        rds += rd_items_w(f)
    tailseq += rds
    nacc = 64 if isA else 56
    for r in range(nacc): A(f"v_mov_b32 v{ACC + r}, 0")
    A(f"s_mov_b32 s70, {XS}"); A(f"s_mov_b32 s71, {-2*XS}")
    A(f"s_mov_b32 s72, {WS_}"); A(f"s_mov_b32 s73, {-2*WS_}")
    A(f"s_mov_b32 s{S_SL}, 0")
    A(f"s_mov_b32 s{S_LC}, 7")
    stamp(A, 1)
    A("s_waitcnt lgkmcnt(0)")
    dbgst(A, 4, SRD_DBG)
    A("s_barrier")
    dbgst(A, 5, SRD_DBG, neg=True); dbgst(A, 6, SRD_DBG)
    stamp(A, 2)
    for it in tailseq:
        if it[0] == 'r': A(it[1]); L.issue(it[2])
    start = list(L.p)
    A.label(f"{P}_loop")
    rdX(1)
    for f in range(F):
        if f == 0: L.wait(("x", 0))
        L.wait(("w", f))
        mm(f, 0)
        rdW(f, 1)
    for f in range(fs + 1):
        if f == 0: L.wait(("x", 1))
        L.wait(("w", f))
        mm(f, 1)
        if f == 0:
            A(f"s_add_u32 s{S_SL}, s{S_SL}, 1")
            A(f"s_cmp_eq_u32 s{S_SL}, 3")
            A(f"s_cselect_b32 s68, s71, s70")
            A(f"s_cselect_b32 s69, s73, s72")
            A(f"s_cselect_b32 s{S_SL}, 0, s{S_SL}")
        if f == 1:
            A(f"v_add_u32 v{VXA0}, s68, v{VXA0}"); A(f"v_add_u32 v{VXA1}, s68, v{VXA1}")
            A(f"v_add_u32 v{VW0}, s69, v{VW0}"); A(f"v_add_u32 v{VW1}, s69, v{VW1}")
    L.wait_all()
    A("s_barrier")
    A(f"s_cmp_lg_u32 s{S_LC}, 7")
    A(f"s_cbranch_scc1 {P}_nohook")
    hook0()
    A.label(f"{P}_nohook")
    for it in tailseq:
        if it[0] == 'm': A(it[1])
        else: A(it[1]); L.issue(it[2])
    A(f"s_sub_u32 s{S_LC}, s{S_LC}, 1")
    A(f"s_cmp_lg_u32 s{S_LC}, 0")
    A(f"s_cbranch_scc1 {P}_loop")
    assert start == L.p, (start, L.p)
    L.wait_all()
    dbgst(A, 7 if isA else 9, SRD_DBG, neg=True); dbgst(A, 8 if isA else 10, SRD_DBG)
    stamp(A, 3)

def epilogue_A(A, P, opt):
    stf = opt.get("stflags", " sc1")
    aL, bL = 8, 11
    aq, bq = 14, 16
    ZERO, NEG = 18, 19
    aR, bR = 20, 32
    csV = 44
    csQ, csK = 48, 56
    TM = [64 + 2 * i for i in range(8)]
    SB = 80
    t0, t1, t2, t3, t4 = 4, 5, 6, 7, 46
    L = LG(A)
    A(f"v_and_b32 v{t0}, 15, v0")
    A(f"v_lshrrev_b32 v{t1}, 4, v0")
    A(f"s_lshl_b32 s72, s{S_RG}, 7")
    A(f"v_lshlrev_b32 v{t0}, 2, v{t0}")
    A(f"v_lshlrev_b32 v{t1}, 4, v{t1}")
    A(f"s_add_u32 s72, s72, {LA1}")
    A(f"v_add_u32 v{t2}, s72, v{t0}")
    A(f"v_add_u32 v{t3}, s72, v{t1}")
    A(f"s_lshr_b32 s73, s{S_W}, 2")
    A(f"s_lshl_b32 s73, s73, 7")
    A(f"s_add_u32 s73, s73, {LCS}")
    A(f"v_add_u32 v{t0}, s73, v{t0}")
    A(f"v_add_u32 v{t1}, s73, v{t1}")
    for dt in range(2):
        A(f"ds_read_b128 {v(csQ+4*dt,4)}, v{t1} offset:{64*dt}"); L.issue("q")
    for tau in range(3):
        A(f"ds_read_b32 v{aL+tau}, v{t2} offset:{64*tau}"); L.issue("q")
        A(f"ds_read_b32 v{bL+tau}, v{t2} offset:{64*tau+LB1-LA1}"); L.issue("q")
    for dt in range(2):
        A(f"ds_read_b128 {v(csK+4*dt,4)}, v{t1} offset:{256+64*dt}"); L.issue("k")
    for dt in range(2):
        A(f"ds_read_b32 v{csV+dt}, v{t0} offset:{512+64*dt}"); L.issue("v")
    L.wait("q")
    for tau in range(3):
        A(f"ds_read_b128 {v(aR+4*tau,4)}, v{t3} offset:{64*tau}"); L.issue("v")
        A(f"ds_read_b128 {v(bR+4*tau,4)}, v{t3} offset:{64*tau+LB1-LA1}"); L.issue("v")
    sc = LOG2E * 28 ** -0.5
    for T in range(2):
        A(f"v_mul_f32 v{aq+T}, {fhex(sc)}, v{aL+T+1}")
        A(f"v_mul_f32 v{bq+T}, {fhex(sc)}, v{bL+T+1}")
    tc = 0
    for dt in range(2):
        for T in range(2):
            for h in range(2):
                z = qreg(dt, T) + 2 * h; t_ = TM[tc % 8]; tc += 1
                pk(A, "mul", t_, ('p', csQ + 4 * dt + 2 * h), ('b', bq + T))
                pk(A, "fma", z, ('p', z), ('b', aq + T), ('p', t_))
    L.wait("k")
    for dt in range(2):
        for tau in range(3):
            for h in range(2):
                z = kreg(dt, tau) + 2 * h; t_ = TM[tc % 8]; tc += 1
                pk(A, "mul", t_, ('p', csK + 4 * dt + 2 * h), ('b', bL + tau))
                pk(A, "fma", z, ('p', z), ('b', aL + tau), ('p', t_))
    smask(A, 74, lane_mask(lambda g, c: g == 3))
    A(f"v_mov_b32 v{ZERO}, 0")
    A(f"v_mov_b32 v{NEG}, {fhex(-3.0e38)}")
    for T in range(2):
        d = qreg(0, T); e = qreg(1, T)
        cvt2(A, d, d, d + 1); cvt2(A, d + 1, d + 2, d + 3); cvt2(A, d + 2, e, e + 1); cvt2(A, d + 3, e + 2, e + 3)
        A(f"v_cndmask_b32 v{d+2}, v{d+2}, v{ZERO}, s[74:75]")
        A(f"v_cndmask_b32 v{d+3}, v{d+3}, v{ZERO}, s[74:75]")
    for tau in range(3):
        d = kreg(0, tau); e = kreg(1, tau)
        cvt2(A, d, d, d + 1); cvt2(A, d + 1, d + 2, d + 3); cvt2(A, d + 2, e, e + 1); cvt2(A, d + 3, e + 2, e + 3)
    for T in range(2):
        mfma(A, SB + 8 * T, kreg(0, T), qreg(0, T), None)
        mfma(A, SB + 8 * T + 4, kreg(0, T + 1), qreg(0, T), None)
    L.wait("v")
    for dt in range(2):
        for tau in range(3):
            for h in range(2):
                z = vreg(dt, tau) + 2 * h; t_ = TM[tc % 8]; tc += 1
                pk(A, "mul", t_, ('p', bR + 4 * tau + 2 * h), ('b', csV + dt))
                pk(A, "fma", z, ('p', z), ('p', aR + 4 * tau + 2 * h), ('p', t_))
    VB = vreg(0, 0)
    for dt in range(2):
        for tau in range(3):
            sb = vreg(dt, tau); d = VB + 12 * dt + 2 * tau
            cvt2(A, d, sb, sb + 1); cvt2(A, d + 1, sb + 2, sb + 3)
    MP, MC = 80, 88
    for r in range(4):
        smask(A, MC + 2 * r, lane_mask(lambda g, c: (c - 4 * g - r) >= 0 and (c - 4 * g - r) % 2 == 0 and (c - 4 * g - r) <= 14))
        smask(A, MP + 2 * r, lane_mask(lambda g, c: (4 * g + r - c) >= 2 and (c - r) % 2 == 0))
    def mask_tile(T):
        for r in range(4):
            A(f"v_cndmask_b32 v{SB+8*T+r}, v{NEG}, v{SB+8*T+r}, s[{MP+2*r}:{MP+2*r+1}]")
            A(f"v_cndmask_b32 v{SB+8*T+4+r}, v{NEG}, v{SB+8*T+4+r}, s[{MC+2*r}:{MC+2*r+1}]")
    mask_tile(1)
    A(f"s_or_b32 s72, s{S_I}, s{S_RG}")
    A(f"s_cmp_eq_u32 s72, 0")
    A(f"s_cselect_b64 s[76:77], 0, -1")
    for r in range(4):
        A(f"s_and_b64 s[{MP+2*r}:{MP+2*r+1}], s[{MP+2*r}:{MP+2*r+1}], s[76:77]")
    mask_tile(0)
    MX = [64, 65]; TX = [66, 67]
    for T in range(2):
        b = SB + 8 * T
        A(f"v_max3_f32 v{MX[T]}, v{b}, v{b+1}, v{b+2}")
        A(f"v_max3_f32 v{TX[T]}, v{b+3}, v{b+4}, v{b+5}")
    for T in range(2):
        b = SB + 8 * T
        A(f"v_max3_f32 v{MX[T]}, v{MX[T]}, v{b+6}, v{b+7}")
    for T in range(2):
        A(f"v_max_f32 v{MX[T]}, v{MX[T]}, v{TX[T]}")
    allreduce_rows(A, "max", MX, TX)
    for T in range(2):
        b = SB + 8 * T
        for h in range(4):
            pk(A, "add", b + 2 * h, ('p', b + 2 * h), ('b', MX[T]), neg=[0, 1])
    for T in range(2):
        b = SB + 8 * T
        for r in range(8): A(f"v_exp_f32 v{b+r}, v{b+r}")
    SM = [68, 70]; T2 = [72, 74]
    for T in range(2):
        b = SB + 8 * T
        pk(A, "add", SM[T], ('p', b), ('p', b + 2))
        pk(A, "add", T2[T], ('p', b + 4), ('p', b + 6))
    for T in range(2): pk(A, "add", SM[T], ('p', SM[T]), ('p', T2[T]))
    for T in range(2): A(f"v_add_f32 v{SM[T]}, v{SM[T]}, v{SM[T]+1}")
    for T in range(2):
        b = SB + 8 * T
        for h in range(4): cvt2(A, b + h, b + 2 * h, b + 2 * h + 1)
    OR_ = {(0, 0): qreg(1, 0), (0, 1): qreg(1, 1), (1, 0): kreg(1, 0), (1, 1): kreg(1, 1)}
    for T in range(2):
        for dt in range(2):
            mfma(A, OR_[(dt, T)], VB + 12 * dt + 2 * T, SB + 8 * T, None)
    allreduce_rows(A, "add", SM, TX)
    for T in range(2): A(f"v_rcp_f32 v{SM[T]}, v{SM[T]}")
    for T in range(2):
        for dt in range(2):
            o = OR_[(dt, T)]
            for h in range(2): pk(A, "mul", o + 2 * h, ('p', o + 2 * h), ('b', SM[T]))
    OF = [48, 52]
    for T in range(2):
        o0, o1 = OR_[(0, T)], OR_[(1, T)]
        cvt2(A, OF[T], o0, o0 + 1); cvt2(A, OF[T] + 1, o0 + 2, o0 + 3)
        cvt2(A, OF[T] + 2, o1, o1 + 1); cvt2(A, OF[T] + 3, o1 + 2, o1 + 3)
        A(f"v_cndmask_b32 v{OF[T]+2}, v{OF[T]+2}, v{ZERO}, s[74:75]")
        A(f"v_cndmask_b32 v{OF[T]+3}, v{OF[T]+3}, v{ZERO}, s[74:75]")
    A(f"s_lshl_b32 s72, s{S_I}, 3")
    A(f"s_lshl_b32 s73, s{S_RG}, 1")
    A(f"s_add_u32 s72, s72, s73")
    A(f"s_lshl_b32 s72, s72, 4")
    A(f"s_add_u32 s72, s72, s{S_J}")
    A(f"s_lshl_b32 s72, s72, 10")
    A(f"s_add_u32 s72, s72, {WS_O}")
    A(f"s_add_u32 s73, s72, 16384")
    A(f"v_lshlrev_b32 v{t0}, 4, v0")
    for T in range(2):
        A(f"buffer_store_dwordx4 {v(OF[T],4)}, v{t0}, {s(SRD_WS,4)}, s{72 + T} offen{stf}")

def gelu_pairs(A, pairs, tmp, c0, S_C1, S_ONE):
    g = len(tmp)
    for b in range(0, len(pairs), g):
        grp = list(zip(pairs[b:b+g], tmp))
        for y, t in grp: pk(A, "mul", t, ('p', y), ('p', y))
        for y, t in grp: pk(A, "fma", t, ('p', t), ('s', S_C1), ('p', c0))
        for y, t in grp: pk(A, "mul", t, ('p', t), ('p', y))
        for y, t in grp:
            A(f"v_exp_f32 v{t}, v{t}"); A(f"v_exp_f32 v{t+1}, v{t+1}")
        for y, t in grp: pk(A, "add", t, ('p', t), ('s', S_ONE))
        for y, t in grp:
            A(f"v_rcp_f32 v{t}, v{t}"); A(f"v_rcp_f32 v{t+1}, v{t+1}")
        for y, t in grp: pk(A, "mul", y, ('p', y), ('p', t))

def gelu_consts(A, C0, S_C1, S_ONE):
    c0 = -2 * LOG2E * 0.7978845608028654; c1 = c0 * 0.044715
    A(f"s_mov_b32 s{S_C1}, {fhex(c1)}"); A(f"s_mov_b32 s{S_C1+1}, {fhex(c1)}")
    A(f"s_mov_b32 s{S_ONE}, 1.0"); A(f"s_mov_b32 s{S_ONE+1}, 1.0")
    A(f"v_mov_b32 v{C0}, {fhex(c0)}"); A(f"v_mov_b32 v{C0+1}, {fhex(c0)}")

def epilogue_Z2(A, P, opt):
    stf = opt.get("stflags", " sc1")
    S_C1, S_ONE = 62, 78
    aR, bR, csL, C0 = 20, 28, 36, 44
    TM = [48 + 2 * i for i in range(8)]
    SV, SV2 = 64, 72
    VL16 = 14
    t0, t1, t3 = 4, 5, 7
    gelu_consts(A, C0, S_C1, S_ONE)
    A(f"v_and_b32 v{t0}, 15, v0")
    A(f"v_lshrrev_b32 v{t1}, 4, v0")
    A(f"s_lshl_b32 s72, s{S_RG}, 7")
    A(f"s_add_u32 s72, s72, {LA1 + 64}")
    A(f"v_lshlrev_b32 v{t0}, 2, v{t0}")
    A(f"v_lshlrev_b32 v{t1}, 4, v{t1}")
    A(f"v_add_u32 v{t3}, s72, v{t1}")
    A(f"v_add_u32 v{t0}, {LCS}, v{t0}")
    A(f"v_lshlrev_b32 v{VL16}, 4, v0")
    L = LG(A)
    for T in range(2):
        A(f"ds_read_b128 {v(aR+4*T,4)}, v{t3} offset:{64*T}"); L.issue("a")
        A(f"ds_read_b128 {v(bR+4*T,4)}, v{t3} offset:{64*T+LB1-LA1}"); L.issue("a")
    for u in range(7):
        A(f"ds_read_b32 v{csL+u}, v{t0} offset:{64*u}"); L.issue("a")
    L.wait_all()
    pairs = []; tcyc = 0
    for u in range(7):
        for T in range(2):
            for h in range(2):
                z = zreg(u, T) + 2 * h
                t = TM[tcyc % 8]; tcyc += 1
                pk(A, "mul", t, ('p', bR + 4 * T + 2 * h), ('b', csL + u))
                pk(A, "fma", z, ('p', z), ('p', aR + 4 * T + 2 * h), ('p', t))
                pairs.append(z)
    gelu_pairs(A, pairs, TM[:7], C0, S_C1, S_ONE)
    for T in range(2):
        for h in range(2):
            d1 = SV + 4 * T + 2 * h; d2 = SV2 + 4 * T + 2 * h
            for u in range(7):
                z = zreg(u, T) + 2 * h
                if u == 0:
                    pk(A, "mul", d2, ('p', z), ('p', z))
                elif u == 1:
                    pk(A, "add", d1, ('p', zreg(0, T) + 2 * h), ('p', z))
                    pk(A, "fma", d2, ('p', z), ('p', z), ('p', d2))
                else:
                    pk(A, "add", d1, ('p', d1), ('p', z))
                    pk(A, "fma", d2, ('p', z), ('p', z), ('p', d2))
    W1 = 48
    for n in range(8):
        A(f"v_add_f32_dpp v{W1+n}, v{SV+n}, v{SV+n} row_mirror row_mask:0xf bank_mask:0x3")
    for n in range(8):
        A(f"v_add_f32_dpp v{W1+n}, v{SV2+n}, v{SV2+n} row_mirror row_mask:0xf bank_mask:0xc")
    W2 = 56
    for n in range(4):
        A(f"v_add_f32_dpp v{W2+n}, v{W1+n}, v{W1+n} row_half_mirror row_mask:0xf bank_mask:0x5")
    for n in range(4):
        A(f"v_add_f32_dpp v{W2+n}, v{W1+n+4}, v{W1+n+4} row_half_mirror row_mask:0xf bank_mask:0xa")
    smask(A, 74, lane_mask(lambda g, c: c & 2))
    smask(A, 76, lane_mask(lambda g, c: c & 1))
    W3 = 60
    for n in range(2):
        A(f"v_cndmask_b32 v{W3+n}, v{W2+n}, v{W2+n+2}, s[74:75]")
        A(f"v_cndmask_b32 v{W3+2+n}, v{W2+n+2}, v{W2+n}, s[74:75]")
    for n in range(2):
        A(f"v_add_f32_dpp v{W3+n}, v{W3+2+n}, v{W3+n} quad_perm:[2,3,0,1] row_mask:0xf bank_mask:0xf")
    G = SV
    A(f"v_cndmask_b32 v{G}, v{W3}, v{W3+1}, s[76:77]")
    A(f"v_cndmask_b32 v{G+1}, v{W3+1}, v{W3}, s[76:77]")
    A(f"v_add_f32_dpp v{G}, v{G+1}, v{G} quad_perm:[1,0,3,2] row_mask:0xf bank_mask:0xf")
    A(f"v_mov_b32_dpp v{G+1}, v{G} row_ror:8 row_mask:0xf bank_mask:0xf")
    A(f"v_mov_b32 v{G+2}, s{S_TAG}")
    A(f"v_mov_b32 v{G+3}, s{S_TAG+1}")
    A(f"v_bfe_u32 v{G+4}, v0, 2, 1")
    A(f"v_lshlrev_b32 v{G+4}, 4, v{G+4}")
    A(f"v_lshrrev_b32 v{G+5}, 4, v0")
    A(f"v_lshl_add_u32 v{G+4}, v{G+5}, 2, v{G+4}")
    A(f"v_and_b32 v{G+5}, 3, v0")
    A(f"v_add_u32 v{G+4}, v{G+4}, v{G+5}")
    A(f"v_lshlrev_b32 v{G+4}, 4, v{G+4}")
    A(f"s_lshl_b32 s72, s{S_I}, 2")
    A(f"s_add_u32 s72, s72, s{S_RG}")
    A(f"s_lshl_b32 s73, s72, 12")
    A(f"s_add_u32 s73, s73, {WS_ST2}")
    A(f"s_lshl_b32 s72, s{S_G}, 9")
    A(f"s_add_u32 s72, s72, s73")
    smask(A, 74, lane_mask(lambda g, c: c < 8))
    A("s_mov_b64 exec, s[74:75]")
    A(f"buffer_store_dwordx4 {v(G,4)}, v{G+4}, {s(SRD_WS,4)}, s72 offen sc1")
    A("s_mov_b64 exec, -1")
    stamp(A, 4)
    PR = [80, 84, 88, 92]
    A(f"s_mov_b32 s{S_PC}, {POLL_MAX}")
    A.label(f"{P}_again")
    for q in range(4):
        A(f"buffer_load_dwordx4 {v(PR[q],4)}, v{VL16}, {s(SRD_WS,4)}, s73 offen offset:{1024*q} sc1")
    A("s_waitcnt vmcnt(0)")
    for q in range(4):
        A(f"v_cmp_eq_u32 vcc, s{S_TAG}, v{PR[q]+2}")
        A(f"v_cmp_eq_u32 s[76:77], s{S_TAG+1}, v{PR[q]+3}")
        A(f"s_and_b64 vcc, vcc, s[76:77]")
        if q == 0: A("s_mov_b64 s[80:81], vcc")
        else: A("s_and_b64 s[80:81], s[80:81], vcc")
    A("s_cmp_eq_u64 s[80:81], -1")
    A(f"s_cbranch_scc1 {P}_ok")
    A(f"s_sub_u32 s{S_PC}, s{S_PC}, 1")
    A(f"s_cmp_lg_u32 s{S_PC}, 0")
    A(f"s_cbranch_scc1 {P}_again")
    A.label(f"{P}_ok")
    dbgst(A, 14, SRD_DBG)
    stamp(A, 6)
    a_, b_ = PR[0], PR[1]
    pk(A, "add", PR[0], ('p', PR[0]), ('p', PR[1]))
    pk(A, "add", PR[2], ('p', PR[2]), ('p', PR[3]))
    pk(A, "add", 52, ('p', PR[0]), ('p', PR[2]))
    A("v_mov_b32 v54, v52"); A("v_mov_b32 v55, v53")
    A("v_permlane32_swap_b32 v52, v54"); A("v_permlane32_swap_b32 v53, v55")
    pk(A, "add", 52, ('p', 52), ('p', 54))
    A(f"v_mul_f32 v52, {fhex(1/896)}, v52")
    A(f"v_mul_f32 v53, {fhex(1/896)}, v53")
    A("v_fma_f32 v53, -v52, v52, v53")
    A("v_max_f32 v53, 0, v53")
    A(f"v_add_f32 v53, {fhex(1e-5)}, v53")
    A("v_rsq_f32 v53, v53")
    A("v_mul_f32 v52, v52, v53")
    A("v_sub_f32 v52, 0, v52")
    A("v_and_b32 v54, 31, v0")
    A("v_lshlrev_b32 v54, 2, v54")
    A(f"s_lshl_b32 s72, s{S_W}, 8")
    A(f"s_add_u32 s72, s72, {LSC}")
    A("v_add_u32 v54, s72, v54")
    A("ds_write_b32 v54, v53")
    A("ds_write_b32 v54, v52 offset:128")
    A("v_lshrrev_b32 v55, 4, v0")
    A("v_lshlrev_b32 v55, 4, v55")
    A("v_add_u32 v55, s72, v55")
    A("s_waitcnt lgkmcnt(0)")
    for T in range(2):
        A(f"ds_read_b128 {v(aR+4*T,4)}, v55 offset:{64*T}")
        A(f"ds_read_b128 {v(bR+4*T,4)}, v55 offset:{128+64*T}")
    A(f"s_lshl_b32 s72, s{S_I}, 2")
    A(f"s_add_u32 s72, s72, s{S_RG}")
    A(f"s_mul_i32 s72, s72, {56*1024}")
    A(f"s_mul_i32 s74, s{S_G}, {7*1024}")
    A(f"s_add_u32 s72, s72, s74")
    A(f"s_add_u32 s72, s72, {WS_Z2N}")
    A(f"s_add_u32 s73, s72, 4096")
    A("s_waitcnt lgkmcnt(0)")
    for u in range(7):
        for T in range(2):
            for h in range(2):
                z = zreg(u, T) + 2 * h
                pk(A, "fma", z, ('p', z), ('p', aR + 4 * T + 2 * h), ('p', bR + 4 * T + 2 * h))
        z = zreg(u, 0)
        cvt2(A, z, z, z + 1); cvt2(A, z + 1, z + 2, z + 3); cvt2(A, z + 2, z + 4, z + 5); cvt2(A, z + 3, z + 6, z + 7)
        A(f"buffer_store_dwordx4 {v(z,4)}, v{VL16}, {s(SRD_WS,4)}, s{72 + (u >> 2)} offen offset:{1024*(u&3)}{stf}")

def epilogue_Z1(A, P, opt):
    stf = opt.get("stflags", " sc1")
    S_C1, S_ONE = 62, 78
    aL, bL, csZ1, C0 = 8, 10, 12, 44
    TM = [48 + 2 * i for i in range(8)]
    VL8 = 46
    t0, t1, t2 = 4, 5, 6
    gelu_consts(A, C0, S_C1, S_ONE)
    A(f"v_and_b32 v{t0}, 15, v0")
    A(f"v_lshrrev_b32 v{t1}, 4, v0")
    A(f"s_lshl_b32 s72, s{S_RG}, 7")
    A(f"s_add_u32 s72, s72, {LA1 + 64}")
    A(f"v_lshlrev_b32 v{t0}, 2, v{t0}")
    A(f"v_lshlrev_b32 v{t1}, 4, v{t1}")
    A(f"v_add_u32 v{t2}, s72, v{t0}")
    A(f"v_add_u32 v{t1}, {LCS + 7*64}, v{t1}")
    A(f"v_lshlrev_b32 v{VL8}, 3, v0")
    L = LG(A)
    for T in range(2):
        A(f"ds_read_b32 v{aL+T}, v{t2} offset:{64*T}"); L.issue("a")
        A(f"ds_read_b32 v{bL+T}, v{t2} offset:{64*T+LB1-LA1}"); L.issue("a")
    for u in range(7):
        A(f"ds_read_b128 {v(csZ1+4*u,4)}, v{t1} offset:{64*u}"); L.issue("a")
    A(f"s_lshl_b32 s74, s{S_I}, 3")
    A(f"s_lshl_b32 s75, s{S_RG}, 1")
    A(f"s_add_u32 s74, s74, s75")
    A(f"s_mul_i32 s74, s74, {56*512}")
    A(f"s_mul_i32 s75, s{S_G}, {7*512}")
    A(f"s_add_u32 s74, s74, s75")
    A(f"s_add_u32 s74, s74, {WS_Z1}")
    A(f"s_add_u32 s75, s74, {56*512}")
    L.wait_all()
    tcyc = 0
    for T in range(2):
        pairs = []
        for u in range(7):
            for h in range(2):
                z = zreg(u, T) + 2 * h
                t = TM[tcyc % 8]; tcyc += 1
                pk(A, "mul", t, ('p', csZ1 + 4 * u + 2 * h), ('b', bL + T))
                pk(A, "fma", z, ('p', z), ('b', aL + T), ('p', t))
                pairs.append(z)
        gelu_pairs(A, pairs, TM[:7], C0, S_C1, S_ONE)
        for u in range(7):
            z = zreg(u, T)
            cvt2(A, z, z, z + 1); cvt2(A, z + 1, z + 2, z + 3)
            A(f"buffer_store_dwordx2 {v(z,2)}, v{VL8}, {s(SRD_WS,4)}, s{74 + T} offen offset:{u*512}{stf}")
    stamp(A, 5)

def compute_p1(A, typ, par, opt):
    P = f"p1{typ}c{par}"
    isA = typ == "A"
    A("s_waitcnt lgkmcnt(0)")
    srd(A, SRD_X, P_X, 2048 * 896)
    if isA: srd(A, SRD_W, P_WQKV, 448 * 2688)
    else: srd(A, SRD_W, P_WIN, 448 * 3584)
    srd(A, SRD_WS, P_WS, WS_BYTES)
    srd(A, SRD_DBG, P_DBG, 256)
    dbgst(A, 2, SRD_DBG, neg=True); dbgst(A, 3, SRD_DBG)
    A(f"s_and_b32 s{S_RG}, s{S_W}, 3")
    A(f"s_lshr_b32 s{S_J}, s{S_W}, 2")
    A(f"s_lshl_b32 s64, s{S_G}, 1")
    A(f"s_add_u32 s{S_J}, s{S_J}, s64")
    A("v_mov_b32 v7, 0")
    A(f"s_or_b32 s72, s2, s{S_W}")
    A("s_cmp_lg_u32 s72, 0")
    A(f"s_cbranch_scc1 {P}_non")
    A("s_memrealtime s[74:75]")
    A("s_waitcnt lgkmcnt(0)")
    A("s_or_b32 s74, s74, 1")
    A("v_mov_b32 v8, s74"); A("v_mov_b32 v9, s75")
    A("s_mov_b64 exec, 1")
    A(f"buffer_store_dwordx2 v[8:9], v7, {s(SRD_DBG,4)}, 0 offen sc1")
    A("s_mov_b64 exec, -1")
    A.label(f"{P}_non")
    lo = isA or par == 0
    hi = isA or par == 1
    def split(flo, fhi, tagn):
        if isA:
            A(f"s_cmp_ge_u32 s{S_W}, 4")
            A(f"s_cbranch_scc1 {P}_{tagn}h")
            flo()
            A(f"s_branch {P}_{tagn}e")
            A.label(f"{P}_{tagn}h")
            fhi()
            A.label(f"{P}_{tagn}e")
        elif par == 0: flo()
        else: fhi()
    split(lambda: cols_load(A, typ, f"{P}_cl"), lambda: rows_load(A), "ld")
    if lo:
        A(f"s_cmp_lg_u32 s{S_W}, 0")
        A(f"s_cbranch_scc1 {P}_nopoll")
        A(f"s_mov_b32 s{S_PC}, {POLL_MAX}")
        A.label(f"{P}_poll")
        A(f"buffer_load_dwordx2 v[8:9], v7, {s(SRD_DBG,4)}, 0 offen sc1")
        A("s_waitcnt vmcnt(0)")
        A("v_readfirstlane_b32 s74, v8")
        A(f"s_sub_u32 s{S_PC}, s{S_PC}, 1")
        A(f"s_cmp_eq_u32 s{S_PC}, 0")
        A(f"s_cbranch_scc1 {P}_pollx")
        A("s_cmp_eq_u32 s74, 0")
        A(f"s_cbranch_scc1 {P}_poll")
        A.label(f"{P}_pollx")
        A(f"v_mov_b32 v10, {LNON}")
        A("ds_write_b64 v10, v[8:9]")
        A.label(f"{P}_nopoll")
    A("s_waitcnt vmcnt(0)")
    split(lambda: cols_compute(A, typ, f"{P}_cc"), lambda: rows_compute(A), "cp")
    compute_addr(A, typ)
    def hook():
        A(f"v_mov_b32 v6, {LNON}")
        A("ds_read_b64 v[6:7], v6")
        A("s_waitcnt lgkmcnt(0)")
        A(f"v_readfirstlane_b32 s{S_TAG}, v6")
        A(f"v_readfirstlane_b32 s{S_TAG+1}, v7")
        split(lambda: cols_publish(A, typ, f"{P}_cq"), lambda: rows_publish(A), "pb")
    main_loop(A, typ, par, P, hook, opt)
    if isA: epilogue_A(A, P, opt)
    elif par == 0: epilogue_Z2(A, P, opt)
    else: epilogue_Z1(A, P, opt)
    if DBGST["on"]:
        A("s_waitcnt vmcnt(0)")
        dbgst(A, 11 if isA else (12 if par == 0 else 13), SRD_DBG)
    stamp(A, 7)

def stamp_flush12(A, kidx=0):
    if not STAMP["on"]: return
    A("s_waitcnt vmcnt(0)")
    stamp(A, 8)
    A("s_memrealtime s[98:99]")
    A("s_waitcnt lgkmcnt(0)")
    A("v_writelane_b32 v166, s98, 62")
    A(f"s_lshl_b32 s96, s2, 4")
    A(f"s_add_u32 s96, s96, s{S_W}")
    A(f"s_lshl_b32 s96, s96, 8")
    A(f"s_add_u32 s96, s96, {WS_DBG + kidx*0x100000}")
    A("v_lshlrev_b32 v167, 2, v0")
    A(f"buffer_store_dword v166, v167, {s(SRD_WS,4)}, s96 offen")

def gen_k1(opt, kidx=0):
    A = Asm()
    prologue(A, "k1_end")
    stamp_init(A)
    wg_map(A)
    A(f"s_cmp_ge_u32 s{S_W}, 8")
    A("s_cbranch_scc1 k1_load")
    A(f"s_cmp_ge_u32 s{S_C}, 8")
    A("s_cbranch_scc1 k1_cB")
    compute_p1(A, "A", 0, opt)
    stamp_flush12(A, kidx)
    A("s_endpgm")
    A.label("k1_cB")
    A(f"s_cmp_ge_u32 s{S_W}, 4")
    A("s_cbranch_scc1 k1_cB1")
    compute_p1(A, "B", 0, opt)
    stamp_flush12(A, kidx)
    A("s_endpgm")
    A.label("k1_cB1")
    compute_p1(A, "B", 1, opt)
    stamp_flush12(A, kidx)
    A("s_endpgm")
    A.label("k1_load")
    for typ in "AB":
        if typ == "A":
            A(f"s_cmp_ge_u32 s{S_C}, 8")
            A("s_cbranch_scc1 k1_lB")
        else:
            A.label("k1_lB")
        for ell in range(4):
            if ell < 3:
                A(f"s_cmp_lg_u32 s{S_W}, {8+ell}")
                A(f"s_cbranch_scc1 k1_l{typ}{ell+1}")
            loader_p1(A, typ, ell, opt)
            stamp_flush12(A, kidx)
            A("s_endpgm")
            if ell < 3: A.label(f"k1_l{typ}{ell+1}")
    A.label("k1_end")
    A("s_endpgm")
    return ("k1_kernel", A.text(), 256, 768, F_LDS, 168)
```

```python
from asmlib import *
from lay import *
import math

LOG2E = 1.4426950408889634
def f2u(x):
    import struct
    return struct.unpack("<I", struct.pack("<f", x))[0]
def fhex(x): return hex(f2u(x))

class Lgkm:
    def __init__(self, A):
        self.A = A; self.p = []
    def issue(self, tag):
        self.p.append(tag); assert len(self.p) <= 15, ("lgkm overflow", self.p)
    def wait(self, tag):
        idx = [i for i, t in enumerate(self.p) if t == tag]
        if not idx: return
        idx = idx[-1]
        n = len(self.p) - 1 - idx
        self.A(f"s_waitcnt lgkmcnt({n})")
        self.p = self.p[idx + 1:]
    def wait_all(self):
        self.A("s_waitcnt lgkmcnt(0)"); self.p = []

def pk(A, op, dst, *srcs, neg=None):
    ops = []; sel = []; selhi = []
    for k, r in srcs:
        if k == 'p':
            assert r % 2 == 0, r
            ops.append(v(r, 2)); sel.append(0); selhi.append(1)
        elif k == 'b':
            ops.append(v(r & ~1, 2)); sel.append(r & 1); selhi.append(r & 1)
        elif k == 's':
            assert r % 2 == 0
            ops.append(s(r, 2)); sel.append(0); selhi.append(1)
        elif k == 'sb':
            ops.append(s(r & ~1, 2)); sel.append(r & 1); selhi.append(r & 1)
    assert dst % 2 == 0
    t = f"v_pk_{op}_f32 {v(dst,2)}, " + ", ".join(ops)
    if any(sel): t += " op_sel:[" + ",".join(map(str, sel)) + "]"
    if not all(selhi): t += " op_sel_hi:[" + ",".join(map(str, selhi)) + "]"
    if neg and any(neg):
        t += " neg_lo:[" + ",".join(map(str, neg)) + "] neg_hi:[" + ",".join(map(str, neg)) + "]"
    A(t)

def mfma(A, d, a_, b_, c):
    cs = "0" if c is None else v(c, 4)
    A(f"v_mfma_f32_16x16x32_bf16 {v(d,4)}, {v(a_,4)}, {v(b_,4)}, {cs}")

def magic_div(d, nmax, shift=16):
    m = ((1 << shift) + d - 1) // d
    for n in range(nmax):
        assert (n * m) >> shift == n // d, (d, n)
    assert nmax * m < (1 << 32)
    return m

def allreduce_rows(A, op, regs, tmp):
    for r, t in zip(regs, tmp): A(f"v_mov_b32 v{t}, v{r}")
    for r, t in zip(regs, tmp): A(f"v_permlane16_swap_b32 v{r}, v{t}")
    for r, t in zip(regs, tmp): A(f"v_{op}_f32 v{r}, v{r}, v{t}")
    for r, t in zip(regs, tmp): A(f"v_mov_b32 v{t}, v{r}")
    for r, t in zip(regs, tmp): A(f"v_permlane32_swap_b32 v{r}, v{t}")
    for r, t in zip(regs, tmp): A(f"v_{op}_f32 v{r}, v{r}, v{t}")

def dpp_row_allreduce(A, regs, steps=(8, 4, 2, 1)):
    for st in steps:
        for r in regs:
            A(f"v_add_f32_dpp v{r}, v{r}, v{r} row_ror:{st} row_mask:0xf bank_mask:0xf")

def prologue(A, end, nwg=256):
    A(f"s_cmp_ge_u32 s2, {nwg}")
    A(f"s_cbranch_scc1 {end}")
    A("s_load_dwordx16 s[8:23], s[0:1], 0")
    A("s_load_dwordx4 s[24:27], s[0:1], 64")
    A("s_load_dwordx2 s[28:29], s[0:1], 80")
    A("v_lshrrev_b32 v1, 6, v0")
    A("v_and_b32 v0, 63, v0")
    A("v_readfirstlane_b32 s3, v1")

P_X, P_WQKV, P_WO, P_WIN, P_WSP, P_BSP, P_WOUT, P_OUT, P_DBG, P_WS = 8, 10, 12, 16, 18, 20, 22, 24, 26, 28
WS_BYTES = 0x1600000

def finish(kernels, path, note=""):
    import hazard
    txt = note
    for (name, body, grid, block, lds, vg) in kernels:
        txt += f"; @launch kernel={name} grid=({grid},1,1) block=({block},1,1) lds={lds}\n"
    txt += '.amdgcn_target "amdgcn-amd-amdhsa--gfx950"\n.text\n'
    for (name, body, grid, block, lds, vg) in kernels:
        txt += kernel_header(name) + hazard.fix(body, True) + "\n"
    txt += '.section .rodata,"a"\n'
    for (name, body, grid, block, lds, vg) in kernels:
        txt += kernel_desc(name, vg)
    open(path, "w").write(txt)
    return txt

def csel(A, dst, a_, b_):
    A(f"s_mov_b32 s{dst}, {b_}")
    A(f"s_cselect_b32 s{dst}, {a_}, s{dst}")

STAMP = {"on": False, "v": 250}
def stamp(A, idx, wait=True, sreg=96):
    if not STAMP["on"]: return
    A(f"s_memtime s[{sreg}:{sreg+1}]")
    if wait:
        A("s_waitcnt lgkmcnt(0)")
        A(f"v_writelane_b32 v{STAMP['v']}, s{sreg}, {idx}")
def stamp_commit(A, idx, sreg=96):
    if STAMP["on"]: A(f"v_writelane_b32 v{STAMP['v']}, s{sreg}, {idx}")
def stamp_init(A):
    if not STAMP["on"]: return
    A(f"v_mov_b32 v{STAMP['v']}, 0")
    A("s_memrealtime s[98:99]")
    A("s_memtime s[96:97]")
    A("s_waitcnt lgkmcnt(0)")
    A(f"v_writelane_b32 v{STAMP['v']}, s98, 63")
    A(f"v_writelane_b32 v{STAMP['v']}, s96, 0")
def stamp_flush(A, srd_ws, s_wave, kidx=0):
    if not STAMP["on"]: return
    A("s_memrealtime s[98:99]")
    A("s_waitcnt lgkmcnt(0)")
    A("v_writelane_b32 v250, s98, 62")
    A(f"s_lshl_b32 s96, s2, 3")
    A(f"s_add_u32 s96, s96, s{s_wave}")
    A(f"s_lshl_b32 s96, s96, 8")
    A(f"s_add_u32 s96, s96, {WS_DBG + kidx*0x80000}")
    A("v_lshlrev_b32 v251, 2, v0")
    A(f"buffer_store_dword v250, v251, {s(srd_ws,4)}, s96 offen")


DBGST = {"on": False}
def dbgst(A, idx, srd_dbg, neg=False, vt=(160, 161)):
    if not DBGST["on"]: return
    A("s_memrealtime s[94:95]")
    A("s_waitcnt lgkmcnt(0)")
    if neg: A("s_not_b32 s94, s94")
    A(f"v_mov_b32 v{vt[0]}, s94")
    A(f"v_mov_b32 v{vt[1]}, 0")
    A("s_mov_b64 exec, 1")
    A(f"buffer_atomic_umax v{vt[0]}, v{vt[1]}, {s(srd_dbg,4)}, 0 offen offset:{4*idx}")
    A("s_mov_b64 exec, -1")
```

```python
from gl import *

LX, LW = 0, 55296
XSA, XSB, WSA, WSB = 18432, 16384, 24576, 28672
LA1 = 153600; LB1 = LA1 + 576; LCS = 154752; LNON = 155648; LSC = 155712
F_LDS = 163840
POLL_MAX = 40000
S_W, S_I, S_C, S_G, S_PC, S_J, S_RG, S_LC, S_SL = 3, 52, 53, 54, 55, 56, 57, 58, 59
S_TAG = 60
T4 = (64, 65, 66, 67)
SRD_X, SRD_W, SRD_WS, SRD_DBG = 32, 36, 44, 48
BIG = 0x7ff00000

class LG(Lgkm):
    def issue(self, tag): self.p.append(tag)
    def wait(self, tag):
        idx = [i for i, t in enumerate(self.p) if t == tag]
        if not idx: return
        idx = idx[-1]
        n = min(len(self.p) - 1 - idx, 15)
        self.A(f"s_waitcnt lgkmcnt({n})")
        self.p = self.p[len(self.p) - n:] if n else []

def cvt2(A, d, lo, hi): A(f"v_cvt_pk_bf16_f32 v{d}, v{lo}, v{hi}")
def lane_mask(fn):
    m = 0
    for l in range(64):
        if fn(l >> 4, l & 15): m |= 1 << l
    return m
def smask(A, sr, m):
    A(f"s_mov_b32 s{sr}, {hex(m & 0xffffffff)}")
    A(f"s_mov_b32 s{sr+1}, {hex(m >> 32)}")

def wg_map(A):
    t0 = 64
    A(f"s_lshr_b32 s{t0}, s2, 3")
    A(f"s_and_b32 s{S_C}, s2, 3")
    A(f"s_lshl_b32 s{S_C}, s{S_C}, 1")
    A(f"s_and_b32 s{S_I}, s{t0}, 1")
    A(f"s_add_u32 s{S_G}, s{S_C}, s{S_I}")
    A(f"s_bfe_u32 s{S_I}, s{t0}, 0x10001")
    A(f"s_lshl_b32 s{S_I}, s{S_I}, 3")
    A(f"s_add_u32 s{S_C}, s{S_G}, s{S_I}")
    A(f"s_lshr_b32 s{t0}, s{t0}, 2")
    A(f"s_bfe_u32 s{S_I}, s2, 0x10002")
    A(f"s_lshl_b32 s{S_I}, s{S_I}, 3")
    A(f"s_add_u32 s{S_I}, s{S_I}, s{t0}")

PRB = 56
def rows_load(A):
    R = PRB; t0 = 64; va, vb = R + 24, R + 25
    A(f"s_lshl_b32 s{t0}, s{S_I}, 4")
    A(f"s_add_u32 s{t0}, s{t0}, s{S_C}")
    A(f"s_lshl_b32 s{t0}, s{t0}, 2")
    A(f"s_add_u32 s{t0}, s{t0}, s{S_RG}")
    A(f"s_mul_i32 s{t0}, s{t0}, 1792")
    A(f"v_lshlrev_b32 v{va}, 4, v0")
    A(f"v_mov_b32 v{vb}, {hex(BIG)}")
    A(f"v_cmp_gt_u32 vcc, 56, v0")
    A(f"v_cndmask_b32 v{va}, v{vb}, v{va}, vcc")
    A(f"buffer_load_dwordx4 {v(R,4)}, v{va}, {s(SRD_X,4)}, s{t0} offen")
    A(f"buffer_load_dwordx4 {v(R+4,4)}, v{va}, {s(SRD_X,4)}, s{t0} offen offset:896")

def rows_compute(A):
    R = PRB; ones = R + 24
    A(f"v_mov_b32 v{ones}, 0x3f803f80")
    S_ = [R + 30, R + 31, R + 32, R + 33]
    for k in range(4): A(f"v_mov_b32 v{S_[k]}, 0")
    for d in range(4):
        for rr in range(2):
            x = R + 4 * rr + d
            A(f"v_dot2_f32_bf16 v{S_[2*rr]}, v{x}, v{ones}, v{S_[2*rr]}")
            A(f"v_dot2_f32_bf16 v{S_[2*rr+1]}, v{x}, v{x}, v{S_[2*rr+1]}")
    dpp_row_allreduce(A, S_)
    allreduce_rows(A, "add", S_, [R + 34, R + 35, R + 36, R + 37])
    A(f"v_cmp_eq_u32 vcc, 1, v0")
    A(f"v_cndmask_b32 v{S_[0]}, v{S_[0]}, v{S_[2]}, vcc")
    A(f"v_cndmask_b32 v{S_[1]}, v{S_[1]}, v{S_[3]}, vcc")
    A(f"v_mul_f32 v{S_[0]}, {fhex(1/448)}, v{S_[0]}")
    A(f"v_mul_f32 v{S_[1]}, {fhex(1/448)}, v{S_[1]}")
    A(f"v_fma_f32 v{S_[1]}, -v{S_[0]}, v{S_[0]}, v{S_[1]}")
    A(f"v_max_f32 v{S_[1]}, 0, v{S_[1]}")
    A(f"v_add_f32 v{S_[1]}, {fhex(1e-5)}, v{S_[1]}")
    A(f"v_rsq_f32 v{R+26}, v{S_[1]}")
    A(f"v_mul_f32 v{R+27}, v{S_[0]}, v{R+26}")
    A(f"v_sub_f32 v{R+27}, 0, v{R+27}")

def rows_publish(A):
    R = PRB; t0 = 64; G = R + 30
    A(f"s_lshl_b32 s{t0}, s{S_I}, 4")
    A(f"s_add_u32 s{t0}, s{t0}, s{S_C}")
    A(f"s_lshl_b32 s{t0}, s{t0}, 2")
    A(f"s_add_u32 s{t0}, s{t0}, s{S_RG}")
    A(f"s_lshl_b32 s{t0}, s{t0}, 5")
    A(f"s_add_u32 s{t0}, s{t0}, {WS_ST1}")
    A(f"v_mov_b32 v{G}, v{R+26}")
    A(f"v_mov_b32 v{G+1}, v{R+27}")
    A(f"v_mov_b32 v{G+2}, s{S_TAG}")
    A(f"v_mov_b32 v{G+3}, s{S_TAG+1}")
    A(f"v_lshlrev_b32 v{R+34}, 4, v0")
    A(f"s_mov_b64 exec, 3")
    A(f"buffer_store_dwordx4 {v(G,4)}, v{R+34}, {s(SRD_WS,4)}, s{t0} offen sc1")
    A(f"s_mov_b64 exec, -1")

def cols_load(A, typ, skip):
    R = PRB; t0, t1, t2, t3 = T4; va, vb = R + 24, R + 25
    nt = 12 if typ == "A" else 14
    A(f"s_cmp_ge_u32 s{S_I}, {nt}")
    A(f"s_cbranch_scc1 {skip}")
    if typ == "A":
        stride = 2688
        A(f"s_lshr_b32 s{t0}, s{S_I}, 2")
        A(f"s_mul_i32 s{t0}, s{t0}, 896")
        A(f"s_mul_i32 s{t1}, s{S_G}, 112")
        A(f"s_add_u32 s{t0}, s{t0}, s{t1}")
        A(f"s_bfe_u32 s{t1}, s{S_I}, 0x10001")
        A(f"s_mul_i32 s{t1}, s{t1}, 56")
        A(f"s_add_u32 s{t0}, s{t0}, s{t1}")
        A(f"s_and_b32 s{t1}, s{S_I}, 1")
        A(f"s_lshl_b32 s{t1}, s{t1}, 5")
        A(f"s_add_u32 s{t0}, s{t0}, s{t1}")
    else:
        stride = 3584
        A(f"s_mul_i32 s{t0}, s{S_G}, 224")
        A(f"s_lshl_b32 s{t1}, s{S_I}, 5")
        A(f"s_add_u32 s{t0}, s{t0}, s{t1}")
        A(f"s_cmp_lt_u32 s{S_I}, 7")
        csel(A, t1, 1792, -224)
        A(f"s_add_u32 s{t0}, s{t0}, s{t1}")
    A(f"s_mul_i32 s{t2}, s{S_RG}, {112*stride}")
    A(f"s_add_u32 s{t0}, s{t0}, s{t2}")
    A(f"v_lshrrev_b32 v{va}, 1, v0")
    A(f"v_mul_u32_u24 v{va}, {stride}, v{va}")
    A(f"v_and_b32 v{vb}, 1, v0")
    A(f"v_lshl_add_u32 v{va}, v{vb}, 4, v{va}")
    for m in range(4):
        if m == 3:
            A(f"v_mov_b32 v{vb}, {hex(BIG)}")
            A(f"v_cmp_gt_u32 vcc, 32, v0")
            A(f"v_cndmask_b32 v{va}, v{vb}, v{va}, vcc")
        A(f"buffer_load_dwordx4 {v(R+8+4*m,4)}, v{va}, {s(SRD_W,4)}, s{t0} offen")
        if m < 3: A(f"s_add_u32 s{t0}, s{t0}, {32*stride}")
    A.label(skip)

def cols_compute(A, typ, skip):
    R = PRB
    nt = 12 if typ == "A" else 14
    A(f"s_cmp_ge_u32 s{S_I}, {nt}")
    A(f"s_cbranch_scc1 {skip}")
    lo, hi = R + 0, R + 1
    A(f"v_mov_b32 v{lo}, 0x00003f80")
    A(f"v_mov_b32 v{hi}, 0x3f800000")
    acc = [R + 30 + k for k in range(8)]
    for k in range(8): A(f"v_mov_b32 v{acc[k]}, 0")
    for m in range(4):
        for d in range(4):
            x = R + 8 + 4 * m + d
            A(f"v_dot2_f32_bf16 v{acc[2*d]}, v{x}, v{lo}, v{acc[2*d]}")
            A(f"v_dot2_f32_bf16 v{acc[2*d+1]}, v{x}, v{hi}, v{acc[2*d+1]}")
    dpp_row_allreduce(A, acc, steps=(8, 4, 2))
    allreduce_rows(A, "add", acc, [R + 2 + k for k in range(8)])
    A(f"v_lshrrev_b32 v{R+2}, 1, v0")
    A(f"v_mov_b32 v{R+28}, v{acc[0]}")
    A(f"v_mov_b32 v{R+29}, v{acc[1]}")
    for d in range(1, 4):
        A(f"v_cmp_eq_u32 vcc, {d}, v{R+2}")
        A(f"v_cndmask_b32 v{R+28}, v{R+28}, v{acc[2*d]}, vcc")
        A(f"v_cndmask_b32 v{R+29}, v{R+29}, v{acc[2*d+1]}, vcc")
    A.label(skip)

def cols_publish(A, typ, skip):
    R = PRB; t0 = 64
    nt = 12 if typ == "A" else 14
    A(f"s_cmp_ge_u32 s{S_I}, {nt}")
    A(f"s_cbranch_scc1 {skip}")
    A(f"s_mul_i32 s{t0}, s{S_C}, 14")
    A(f"s_add_u32 s{t0}, s{t0}, s{S_I}")
    A(f"s_lshl_b32 s{t0}, s{t0}, 2")
    A(f"s_add_u32 s{t0}, s{t0}, s{S_RG}")
    A(f"s_lshl_b32 s{t0}, s{t0}, 7")
    A(f"s_add_u32 s{t0}, s{t0}, {WS_CS}")
    G2 = R + 36
    A(f"v_mov_b32 v{G2}, v{R+28}")
    A(f"v_mov_b32 v{G2+1}, v{R+29}")
    A(f"v_mov_b32 v{G2+2}, s{S_TAG}")
    A(f"v_mov_b32 v{G2+3}, s{S_TAG+1}")
    A(f"v_and_b32 v{R+35}, 1, v0")
    A(f"v_lshrrev_b32 v{R+34}, 1, v0")
    A(f"v_lshl_add_u32 v{R+34}, v{R+35}, 2, v{R+34}")
    A(f"v_lshlrev_b32 v{R+34}, 4, v{R+34}")
    A(f"s_mov_b64 exec, 0xff")
    A(f"buffer_store_dwordx4 {v(G2,4)}, v{R+34}, {s(SRD_WS,4)}, s{t0} offen sc1")
    A(f"s_mov_b64 exec, -1")
    A.label(skip)

def kperm16(A, rho, out, t):
    A(f"v_and_b32 v{out}, 3, v{rho}")
    A(f"v_lshrrev_b32 v{t}, 2, v{rho}")
    A(f"v_lshl_add_u32 v{out}, v{t}, 3, v{out}")

def voff_wq(A, beta, dst, t, s_col):
    n, rho, c, k = t
    A(f"v_add_u32 v{n}, {64*beta}, v0")
    m = magic_div(24, 384)
    A(f"v_mul_u32_u24 v{rho}, {m}, v{n}")
    A(f"v_lshrrev_b32 v{rho}, 16, v{rho}")
    A(f"v_mul_u32_u24 v{c}, 24, v{rho}")
    A(f"v_sub_u32 v{c}, v{n}, v{c}")
    kperm16(A, rho, k, n)
    A(f"v_mul_u32_u24 v{dst}, 2688, v{k}")
    A(f"v_bfe_u32 v{k}, v{rho}, 1, 2")
    A(f"v_lshrrev_b32 v{n}, 1, v{c}")
    A(f"v_xor_b32 v{n}, v{n}, v{k}")
    A(f"v_lshrrev_b32 v{k}, 2, v{n}")
    A(f"v_mul_u32_u24 v{k}, 896, v{k}")
    A(f"v_add_u32 v{dst}, v{dst}, v{k}")
    A(f"v_bfe_u32 v{k}, v{n}, 1, 1")
    A(f"v_mul_u32_u24 v{k}, 56, v{k}")
    A(f"v_add_u32 v{dst}, v{dst}, v{k}")
    A(f"v_and_b32 v{n}, 1, v{n}")
    A(f"v_lshl_add_u32 v{dst}, v{n}, 5, v{dst}")
    A(f"v_and_b32 v{c}, 1, v{c}")
    A(f"v_lshl_add_u32 v{dst}, v{c}, 4, v{dst}")
    A(f"v_add_u32 v{dst}, s{s_col}, v{dst}")

def voff_wz(A, beta, dst, t, s_col):
    n, rho, c, k = t
    A(f"v_add_u32 v{n}, {64*beta}, v0")
    m = magic_div(28, 448)
    A(f"v_mul_u32_u24 v{rho}, {m}, v{n}")
    A(f"v_lshrrev_b32 v{rho}, 16, v{rho}")
    A(f"v_mul_u32_u24 v{c}, 28, v{rho}")
    A(f"v_sub_u32 v{c}, v{n}, v{c}")
    kperm16(A, rho, k, n)
    A(f"v_mul_u32_u24 v{dst}, 3584, v{k}")
    A(f"v_bfe_u32 v{k}, v{rho}, 2, 1")
    A(f"v_lshrrev_b32 v{n}, 1, v{c}")
    A(f"v_xor_b32 v{n}, v{n}, v{k}")
    A(f"v_lshl_add_u32 v{dst}, v{n}, 5, v{dst}")
    A(f"v_mov_b32 v{k}, 1792")
    A(f"v_mov_b32 v{rho}, -224")
    A(f"v_cmp_gt_u32 vcc, 7, v{n}")
    A(f"v_cndmask_b32 v{k}, v{rho}, v{k}, vcc")
    A(f"v_add_u32 v{dst}, v{dst}, v{k}")
    A(f"v_and_b32 v{c}, 1, v{c}")
    A(f"v_lshl_add_u32 v{dst}, v{c}, 4, v{dst}")
    A(f"v_add_u32 v{dst}, s{s_col}, v{dst}")

DK = [0, 4, 32, 36]
def loader_p1(A, typ, ell, opt):
    P = f"p1{typ}l{ell}"
    isA = typ == "A"
    XS, WS_ = (XSA, WSA) if isA else (XSB, WSB)
    stride = 2688 if isA else 3584
    NB = 6 if isA else 7
    voff = voff_wq if isA else voff_wz
    t = (20, 21, 22, 23)
    A(f"s_mul_i32 s68, s{S_G}, {112 if isA else 224}")
    pieces = []
    wb = {}
    nxt = [8]
    def base(b):
        if b not in wb:
            wb[b] = nxt[0]; nxt[0] += 1
            voff(A, b, wb[b], t, 68)
        return wb[b]
    def wp(b, ms):
        r = base(b)
        for m in ms: pieces.append(("w", r, DK[m] * stride, (NB * m + b) * 1024))
    if ell < 2:
        A(f"v_lshrrev_b32 v20, 4, v0")
        A(f"v_add_u32 v20, {4*ell}, v20")
        A(f"v_and_b32 v21, 7, v0")
        A(f"v_xor_b32 v20, v20, v21")
        A(f"v_and_b32 v20, 7, v20")
        A(f"v_lshlrev_b32 v20, 4, v20")
        A(f"v_lshrrev_b32 v21, 3, v0")
        A(f"s_lshl_b32 s72, s{S_I}, 7")
        A(f"s_add_u32 s72, s72, {8*ell}")
        A(f"v_add_u32 v21, s72, v21")
        A(f"v_mul_u32_u24 v9, 896, v21")
        A(f"v_add_u32 v9, v9, v20")
        nxt[0] = 10
        if isA:
            A(f"v_subrev_u32 v21, 16, v21")
            A(f"v_max_i32 v21, 0, v21")
            A(f"v_mul_u32_u24 v8, 896, v21")
            A(f"v_add_u32 v8, v8, v20")
            for m in range(9):
                p = ell + 2 * m
                pieces.append(("x", 8 if m == 0 else 9, 0 if m == 0 else (m - 1) * 14336, p * 1024))
            wp(ell, (0, 1))
        else:
            for m in range(8):
                pieces.append(("x", 9, m * 14336, (ell + 2 * m) * 1024))
            wp(ell, (0, 1, 2))
    elif isA:
        if ell == 2: wp(2, range(4)); wp(3, range(4)); wp(0, (2, 3))
        else: wp(4, range(4)); wp(5, range(4)); wp(1, (2, 3))
    else:
        if ell == 2: wp(2, range(4)); wp(3, range(4)); wp(0, (3,)); wp(1, (3,)); wp(6, (0,))
        else: wp(4, range(4)); wp(5, range(4)); wp(6, (1, 2, 3))
    npc = len(pieces)
    A("s_waitcnt lgkmcnt(0)")
    srd(A, SRD_X, P_X, 2048 * 896)
    if isA: srd(A, SRD_W, P_WQKV, 448 * 2688)
    else: srd(A, SRD_W, P_WIN, 448 * 3584)
    srd(A, SRD_WS, P_WS, WS_BYTES)
    def issue(S_):
        if opt.get("nodma") and S_ >= 3: return
        sl = S_ % 3
        for kind, vr, so, lo in pieces:
            b, ss, step, sr = (LX, XS, 128, SRD_X) if kind == "x" else (LW, WS_, 64 * stride, SRD_W)
            A(f"s_mov_b32 m0, {b + sl * ss + lo}")
            A(f"s_mov_b32 s73, {S_ * step + so}")
            A(f"buffer_load_dwordx4 v{vr}, {s(sr,4)}, s73 offen lds")
    nt = 12 if isA else 14
    def table_loads():
        if ell < 3:
            A(f"s_lshl_b32 s72, s{S_I}, 7")
            A(f"s_add_u32 s72, s72, {64*ell}")
            A(f"v_add_u32 v24, s72, v0")
            A(f"v_subrev_u32 v24, 16, v24")
            A(f"v_max_i32 v24, 0, v24")
            A(f"v_lshlrev_b32 v24, 4, v24")
            if ell == 2:
                A(f"s_lshl_b32 s72, s{S_I}, 7")
                A(f"s_add_u32 s72, s72, 127")
                A(f"s_lshl_b32 s72, s72, 4")
                A(f"v_min_u32 v24, s72, v24")
            A(f"buffer_load_dwordx4 v[28:31], v24, {s(SRD_WS,4)}, 0 offen sc1")
        if ell >= 2:
            A(f"v_add_u32 v25, {64*(ell-2)}, v0")
            A(f"v_lshrrev_b32 v26, 3, v25")
            A(f"v_min_u32 v26, {nt-1}, v26")
            A(f"s_mul_i32 s72, s{S_C}, 14")
            A(f"v_add_u32 v26, s72, v26")
            A(f"v_lshlrev_b32 v26, 9, v26")
            A(f"v_and_b32 v25, 7, v25")
            A(f"v_lshl_add_u32 v26, v25, 4, v26")
            A(f"s_mov_b32 s72, {WS_CS}")
            for q in range(4):
                A(f"buffer_load_dwordx4 {v(32+4*q,4)}, v26, {s(SRD_WS,4)}, s72 offen offset:{128*q} sc1")
    def table_check(fail):
        regs = ([28] if ell < 3 else []) + ([32, 36, 40, 44] if ell >= 2 else [])
        first = True
        for r in regs:
            A(f"v_cmp_eq_u32 vcc, s{S_TAG}, v{r+2}")
            A(f"v_cmp_eq_u32 s[74:75], s{S_TAG+1}, v{r+3}")
            A(f"s_and_b64 vcc, vcc, s[74:75]")
            if first: A(f"s_mov_b64 s[76:77], vcc")
            else: A(f"s_and_b64 s[76:77], s[76:77], vcc")
            first = False
        A(f"s_cmp_eq_u64 s[76:77], -1")
        A(f"s_cbranch_scc0 {fail}")
    def table_write():
        if ell < 3:
            A(f"v_lshlrev_b32 v24, 2, v0")
            A(f"v_add_u32 v24, {LA1 + 256*ell}, v24")
            if ell == 2: A("s_mov_b64 exec, 0xffff")
            A(f"ds_write_b32 v24, v28")
            A(f"ds_write_b32 v24, v29 offset:{LB1-LA1}")
            if ell == 2: A("s_mov_b64 exec, -1")
        if ell >= 2:
            pk(A, "add", 32, ('p', 32), ('p', 36))
            pk(A, "add", 40, ('p', 40), ('p', 44))
            pk(A, "add", 32, ('p', 32), ('p', 40))
            A(f"v_lshlrev_b32 v24, 3, v0")
            A(f"v_add_u32 v24, {LCS + 512*(ell-2)}, v24")
            if ell == 3: A(f"s_mov_b32 exec_hi, 0xffff")
            A(f"ds_write_b64 v24, v[32:33]")
            if ell == 3: A("s_mov_b64 exec, -1")
    TL = opt.get("tl", 4)
    stamp(A, 1)
    issue(0); issue(1)
    stamp(A, 2)
    A(f"s_waitcnt vmcnt({npc})")
    stamp(A, 3)
    A("s_barrier")
    issue(2)
    A(f"v_mov_b32 v24, {LNON}")
    A("ds_read_b64 v[26:27], v24")
    A("s_waitcnt lgkmcnt(0)")
    A(f"v_readfirstlane_b32 s{S_TAG}, v26")
    A(f"v_readfirstlane_b32 s{S_TAG+1}, v27")
    A(f"s_mov_b32 s{S_PC}, {POLL_MAX}")
    for n in range(1, 7):
        if n == TL + 1:
            A("s_waitcnt vmcnt(0)" if n + 1 > 6 or True else "")
            table_check(f"{P}_retry")
            A.label(f"{P}_tok")
            table_write()
            A("s_waitcnt lgkmcnt(0)")
        else:
            A(f"s_waitcnt vmcnt({npc if n + 1 <= 6 else 0})")
        stamp(A, 3 + n)
        A("s_barrier")
        if n == TL: table_loads()
        if n + 2 <= 6: issue(n + 2)
    A("s_barrier")
    stamp(A, 10)
    A(f"s_branch {P}_done")
    A.label(f"{P}_retry")
    A(f"s_sub_u32 s{S_PC}, s{S_PC}, 1")
    A(f"s_cmp_eq_u32 s{S_PC}, 0")
    A(f"s_cbranch_scc1 {P}_tok")
    table_loads()
    A("s_waitcnt vmcnt(0)")
    table_check(f"{P}_retry")
    A(f"s_branch {P}_tok")
    A.label(f"{P}_done")

VXA0, VXA1, VW0, VW1 = 2, 3, 4, 5
XF, WR, ACC = 8, 32, 96
def qreg(dt, T): return ACC + 4 * (2 * dt + T)
def kreg(dt, tau): return ACC + 16 + 4 * (3 * dt + tau)
def vreg(dt, tau): return ACC + 40 + 4 * (3 * dt + tau)
def zreg(n, T): return ACC + 4 * (2 * n + T)
def b_tiles(par):
    return [('z2' if par == 0 else 'z1', u) for u in range(7)]

def compute_addr(A, typ):
    isA = typ == "A"
    A("v_and_b32 v8, 15, v0")
    A("v_lshrrev_b32 v9, 4, v0")
    A("v_lshrrev_b32 v10, 1, v8")
    A("v_xor_b32 v10, v10, v9")
    A("v_lshlrev_b32 v10, 4, v10")
    A("v_lshl_add_u32 v10, v8, 7, v10")
    A(f"s_lshl_b32 s72, s{S_RG}, 12")
    A(f"v_add_u32 v{VXA0}, s72, v10")
    A(f"v_xor_b32 v{VXA1}, 64, v{VXA0}")
    A("v_lshrrev_b32 v10, 2, v8")
    A("v_lshl_add_u32 v10, v9, 2, v10")
    A("v_and_b32 v11, 3, v8")
    A("v_lshlrev_b32 v11, 3, v11")
    A(f"v_mul_u32_u24 v12, {384 if isA else 448}, v10")
    A(f"v_add_u32 v12, v12, v11")
    A(f"v_add_u32 v12, {LW}, v12")
    if isA:
        A("v_and_b32 v11, 1, v9")
        A("v_lshlrev_b32 v11, 1, v11")
        A("v_lshrrev_b32 v13, 3, v8")
        A("v_add_u32 v11, v11, v13")
        A(f"s_lshr_b32 s72, s{S_W}, 2")
        A(f"s_lshl_b32 s72, s72, 1")
        A(f"v_xor_b32 v11, s72, v11")
        A(f"v_lshl_add_u32 v{VW0}, v11, 5, v12")
        A(f"v_xor_b32 v11, 1, v11")
        A(f"v_lshl_add_u32 v{VW1}, v11, 5, v12")
    else:
        A("v_and_b32 v11, 1, v9")
        A(f"v_lshl_add_u32 v{VW0}, v11, 5, v12")
        A(f"v_xor_b32 v11, 1, v11")
        A(f"v_lshl_add_u32 v{VW1}, v11, 5, v12")

def main_loop(A, typ, par, P, hook0, opt={}):
    isA = typ == "A"
    XS, WS_ = (XSA, WSA) if isA else (XSB, WSB)
    stride = 384 if isA else 448
    NX = 3 if isA else 2
    F = 6 if isA else 7
    fs = 2
    L = LG(A)
    if isA:
        tl = [(sec, dt) for sec in range(3) for dt in range(2)]
        def waddr(f):
            sec, dt = tl[f]; return (VW1 if dt else VW0), sec * 128
    else:
        tl = b_tiles(par)
        def waddr(f):
            kind, u = tl[f]; t = u if kind == 'z2' else 7 + u
            return (VW1 if t & 1 else VW0), (t >> 1) * 64
    def rdX(kk):
        if opt.get("nords"): return
        for tau in range(NX):
            A(f"ds_read_b128 {v(XF + 12*kk + 4*tau, 4)}, v{VXA1 if kk else VXA0} offset:{LX + tau*2048}")
            L.issue(("x", kk))
    def rdW(f, kk):
        if opt.get("nords"): return
        ad, off = waddr(f); r = WR + 4 * f
        for sec in range(2):
            A(f"ds_read_b64_tr_b16 {v(r + 2*sec, 2)}, v{ad} offset:{off + (32*kk + 16*sec) * stride}")
            L.issue(("w", f))
    def mm(f, kk): _mm(A, f, kk)
    def _mm(A, f, kk):
        if opt.get("nomm"): return
        r = WR + 4 * f; xb = XF + 12 * kk
        if isA:
            sec, dt = tl[f]
            if sec == 0:
                for T in range(2): mfma(A, qreg(dt, T), r, xb + 4 * (T + 1), qreg(dt, T))
            elif sec == 1:
                for tau in range(3): mfma(A, kreg(dt, tau), r, xb + 4 * tau, kreg(dt, tau))
            else:
                for tau in range(3): mfma(A, vreg(dt, tau), xb + 4 * tau, r, vreg(dt, tau))
        else:
            kind, u = tl[f]
            for T in range(2):
                if kind == 'z2': mfma(A, zreg(f, T), xb + 4 * T, r, zreg(f, T))
                else: mfma(A, zreg(f, T), r, xb + 4 * T, zreg(f, T))
    def rd_items_x():
        return [] if opt.get("nords") else [('r', f"ds_read_b128 {v(XF + 4*tau, 4)}, v{VXA0} offset:{LX + tau*2048}", ("x", 0)) for tau in range(NX)]
    def rd_items_w(f):
        if opt.get("nords"): return []
        ad, off = waddr(f); r = WR + 4 * f
        return [('r', f"ds_read_b64_tr_b16 {v(r + 2*sec, 2)}, v{ad} offset:{off + 16*sec*stride}", ("w", f)) for sec in range(2)]
    rds = rd_items_x()
    for f in range(fs + 1): rds += rd_items_w(f)
    tailseq = []
    tm = []
    for f in range(fs + 1, F):
        lines = []
        _mm(lambda s_: lines.append(s_), f, 1)
        tm.append((f, lines))
    nm = sum(len(x[1]) for x in tm)
    per = 2
    for f, lines in tm:
        for ln in lines:
            tailseq.append(('m', ln))
            for _ in range(per):
                if rds: tailseq.append(rds.pop(0))
        rds += rd_items_w(f)
    tailseq += rds
    nacc = 64 if isA else 56
    for r in range(nacc): A(f"v_mov_b32 v{ACC + r}, 0")
    A(f"s_mov_b32 s70, {XS}"); A(f"s_mov_b32 s71, {-2*XS}")
    A(f"s_mov_b32 s72, {WS_}"); A(f"s_mov_b32 s73, {-2*WS_}")
    A(f"s_mov_b32 s{S_SL}, 0")
    A(f"s_mov_b32 s{S_LC}, 7")
    stamp(A, 1)
    A("s_waitcnt lgkmcnt(0)")
    dbgst(A, 4, SRD_DBG)
    A("s_barrier")
    dbgst(A, 5, SRD_DBG, neg=True); dbgst(A, 6, SRD_DBG)
    stamp(A, 2)
    for it in tailseq:
        if it[0] == 'r': A(it[1]); L.issue(it[2])
    start = list(L.p)
    A.label(f"{P}_loop")
    rdX(1)
    for f in range(F):
        if f == 0: L.wait(("x", 0))
        L.wait(("w", f))
        mm(f, 0)
        rdW(f, 1)
    for f in range(fs + 1):
        if f == 0: L.wait(("x", 1))
        L.wait(("w", f))
        mm(f, 1)
        if f == 0:
            A(f"s_add_u32 s{S_SL}, s{S_SL}, 1")
            A(f"s_cmp_eq_u32 s{S_SL}, 3")
            A(f"s_cselect_b32 s68, s71, s70")
            A(f"s_cselect_b32 s69, s73, s72")
            A(f"s_cselect_b32 s{S_SL}, 0, s{S_SL}")
        if f == 1:
            A(f"v_add_u32 v{VXA0}, s68, v{VXA0}"); A(f"v_add_u32 v{VXA1}, s68, v{VXA1}")
            A(f"v_add_u32 v{VW0}, s69, v{VW0}"); A(f"v_add_u32 v{VW1}, s69, v{VW1}")
    L.wait_all()
    A("s_barrier")
    A(f"s_cmp_lg_u32 s{S_LC}, 7")
    A(f"s_cbranch_scc1 {P}_nohook")
    hook0()
    A.label(f"{P}_nohook")
    for it in tailseq:
        if it[0] == 'm': A(it[1])
        else: A(it[1]); L.issue(it[2])
    A(f"s_sub_u32 s{S_LC}, s{S_LC}, 1")
    A(f"s_cmp_lg_u32 s{S_LC}, 0")
    A(f"s_cbranch_scc1 {P}_loop")
    assert start == L.p, (start, L.p)
    L.wait_all()
    dbgst(A, 7 if isA else 9, SRD_DBG, neg=True); dbgst(A, 8 if isA else 10, SRD_DBG)
    stamp(A, 3)

def epilogue_A(A, P, opt):
    stf = opt.get("stflags", " sc1")
    aL, bL = 8, 11
    aq, bq = 14, 16
    ZERO, NEG = 18, 19
    aR, bR = 20, 32
    csV = 44
    csQ, csK = 48, 56
    TM = [64 + 2 * i for i in range(8)]
    SB = 80
    t0, t1, t2, t3, t4 = 4, 5, 6, 7, 46
    L = LG(A)
    A(f"v_and_b32 v{t0}, 15, v0")
    A(f"v_lshrrev_b32 v{t1}, 4, v0")
    A(f"s_lshl_b32 s72, s{S_RG}, 7")
    A(f"v_lshlrev_b32 v{t0}, 2, v{t0}")
    A(f"v_lshlrev_b32 v{t1}, 4, v{t1}")
    A(f"s_add_u32 s72, s72, {LA1}")
    A(f"v_add_u32 v{t2}, s72, v{t0}")
    A(f"v_add_u32 v{t3}, s72, v{t1}")
    A(f"s_lshr_b32 s73, s{S_W}, 2")
    A(f"s_lshl_b32 s73, s73, 7")
    A(f"s_add_u32 s73, s73, {LCS}")
    A(f"v_add_u32 v{t0}, s73, v{t0}")
    A(f"v_add_u32 v{t1}, s73, v{t1}")
    for dt in range(2):
        A(f"ds_read_b128 {v(csQ+4*dt,4)}, v{t1} offset:{64*dt}"); L.issue("q")
    for tau in range(3):
        A(f"ds_read_b32 v{aL+tau}, v{t2} offset:{64*tau}"); L.issue("q")
        A(f"ds_read_b32 v{bL+tau}, v{t2} offset:{64*tau+LB1-LA1}"); L.issue("q")
    for dt in range(2):
        A(f"ds_read_b128 {v(csK+4*dt,4)}, v{t1} offset:{256+64*dt}"); L.issue("k")
    for dt in range(2):
        A(f"ds_read_b32 v{csV+dt}, v{t0} offset:{512+64*dt}"); L.issue("v")
    L.wait("q")
    for tau in range(3):
        A(f"ds_read_b128 {v(aR+4*tau,4)}, v{t3} offset:{64*tau}"); L.issue("v")
        A(f"ds_read_b128 {v(bR+4*tau,4)}, v{t3} offset:{64*tau+LB1-LA1}"); L.issue("v")
    sc = LOG2E * 28 ** -0.5
    for T in range(2):
        A(f"v_mul_f32 v{aq+T}, {fhex(sc)}, v{aL+T+1}")
        A(f"v_mul_f32 v{bq+T}, {fhex(sc)}, v{bL+T+1}")
    tc = 0
    for dt in range(2):
        for T in range(2):
            for h in range(2):
                z = qreg(dt, T) + 2 * h; t_ = TM[tc % 8]; tc += 1
                pk(A, "mul", t_, ('p', csQ + 4 * dt + 2 * h), ('b', bq + T))
                pk(A, "fma", z, ('p', z), ('b', aq + T), ('p', t_))
    L.wait("k")
    for dt in range(2):
        for tau in range(3):
            for h in range(2):
                z = kreg(dt, tau) + 2 * h; t_ = TM[tc % 8]; tc += 1
                pk(A, "mul", t_, ('p', csK + 4 * dt + 2 * h), ('b', bL + tau))
                pk(A, "fma", z, ('p', z), ('b', aL + tau), ('p', t_))
    smask(A, 74, lane_mask(lambda g, c: g == 3))
    A(f"v_mov_b32 v{ZERO}, 0")
    A(f"v_mov_b32 v{NEG}, {fhex(-3.0e38)}")
    for T in range(2):
        d = qreg(0, T); e = qreg(1, T)
        cvt2(A, d, d, d + 1); cvt2(A, d + 1, d + 2, d + 3); cvt2(A, d + 2, e, e + 1); cvt2(A, d + 3, e + 2, e + 3)
        A(f"v_cndmask_b32 v{d+2}, v{d+2}, v{ZERO}, s[74:75]")
        A(f"v_cndmask_b32 v{d+3}, v{d+3}, v{ZERO}, s[74:75]")
    for tau in range(3):
        d = kreg(0, tau); e = kreg(1, tau)
        cvt2(A, d, d, d + 1); cvt2(A, d + 1, d + 2, d + 3); cvt2(A, d + 2, e, e + 1); cvt2(A, d + 3, e + 2, e + 3)
    for T in range(2):
        mfma(A, SB + 8 * T, kreg(0, T), qreg(0, T), None)
        mfma(A, SB + 8 * T + 4, kreg(0, T + 1), qreg(0, T), None)
    L.wait("v")
    for dt in range(2):
        for tau in range(3):
            for h in range(2):
                z = vreg(dt, tau) + 2 * h; t_ = TM[tc % 8]; tc += 1
                pk(A, "mul", t_, ('p', bR + 4 * tau + 2 * h), ('b', csV + dt))
                pk(A, "fma", z, ('p', z), ('p', aR + 4 * tau + 2 * h), ('p', t_))
    VB = vreg(0, 0)
    for dt in range(2):
        for tau in range(3):
            sb = vreg(dt, tau); d = VB + 12 * dt + 2 * tau
            cvt2(A, d, sb, sb + 1); cvt2(A, d + 1, sb + 2, sb + 3)
    MP, MC = 80, 88
    for r in range(4):
        smask(A, MC + 2 * r, lane_mask(lambda g, c: (c - 4 * g - r) >= 0 and (c - 4 * g - r) % 2 == 0 and (c - 4 * g - r) <= 14))
        smask(A, MP + 2 * r, lane_mask(lambda g, c: (4 * g + r - c) >= 2 and (c - r) % 2 == 0))
    def mask_tile(T):
        for r in range(4):
            A(f"v_cndmask_b32 v{SB+8*T+r}, v{NEG}, v{SB+8*T+r}, s[{MP+2*r}:{MP+2*r+1}]")
            A(f"v_cndmask_b32 v{SB+8*T+4+r}, v{NEG}, v{SB+8*T+4+r}, s[{MC+2*r}:{MC+2*r+1}]")
    mask_tile(1)
    A(f"s_or_b32 s72, s{S_I}, s{S_RG}")
    A(f"s_cmp_eq_u32 s72, 0")
    A(f"s_cselect_b64 s[76:77], 0, -1")
    for r in range(4):
        A(f"s_and_b64 s[{MP+2*r}:{MP+2*r+1}], s[{MP+2*r}:{MP+2*r+1}], s[76:77]")
    mask_tile(0)
    MX = [64, 65]; TX = [66, 67]
    for T in range(2):
        b = SB + 8 * T
        A(f"v_max3_f32 v{MX[T]}, v{b}, v{b+1}, v{b+2}")
        A(f"v_max3_f32 v{TX[T]}, v{b+3}, v{b+4}, v{b+5}")
    for T in range(2):
        b = SB + 8 * T
        A(f"v_max3_f32 v{MX[T]}, v{MX[T]}, v{b+6}, v{b+7}")
    for T in range(2):
        A(f"v_max_f32 v{MX[T]}, v{MX[T]}, v{TX[T]}")
    allreduce_rows(A, "max", MX, TX)
    for T in range(2):
        b = SB + 8 * T
        for h in range(4):
            pk(A, "add", b + 2 * h, ('p', b + 2 * h), ('b', MX[T]), neg=[0, 1])
    for T in range(2):
        b = SB + 8 * T
        for r in range(8): A(f"v_exp_f32 v{b+r}, v{b+r}")
    SM = [68, 70]; T2 = [72, 74]
    for T in range(2):
        b = SB + 8 * T
        pk(A, "add", SM[T], ('p', b), ('p', b + 2))
        pk(A, "add", T2[T], ('p', b + 4), ('p', b + 6))
    for T in range(2): pk(A, "add", SM[T], ('p', SM[T]), ('p', T2[T]))
    for T in range(2): A(f"v_add_f32 v{SM[T]}, v{SM[T]}, v{SM[T]+1}")
    for T in range(2):
        b = SB + 8 * T
        for h in range(4): cvt2(A, b + h, b + 2 * h, b + 2 * h + 1)
    OR_ = {(0, 0): qreg(1, 0), (0, 1): qreg(1, 1), (1, 0): kreg(1, 0), (1, 1): kreg(1, 1)}
    for T in range(2):
        for dt in range(2):
            mfma(A, OR_[(dt, T)], VB + 12 * dt + 2 * T, SB + 8 * T, None)
    allreduce_rows(A, "add", SM, TX)
    for T in range(2): A(f"v_rcp_f32 v{SM[T]}, v{SM[T]}")
    for T in range(2):
        for dt in range(2):
            o = OR_[(dt, T)]
            for h in range(2): pk(A, "mul", o + 2 * h, ('p', o + 2 * h), ('b', SM[T]))
    OF = [48, 52]
    for T in range(2):
        o0, o1 = OR_[(0, T)], OR_[(1, T)]
        cvt2(A, OF[T], o0, o0 + 1); cvt2(A, OF[T] + 1, o0 + 2, o0 + 3)
        cvt2(A, OF[T] + 2, o1, o1 + 1); cvt2(A, OF[T] + 3, o1 + 2, o1 + 3)
        A(f"v_cndmask_b32 v{OF[T]+2}, v{OF[T]+2}, v{ZERO}, s[74:75]")
        A(f"v_cndmask_b32 v{OF[T]+3}, v{OF[T]+3}, v{ZERO}, s[74:75]")
    A(f"s_lshl_b32 s72, s{S_I}, 3")
    A(f"s_lshl_b32 s73, s{S_RG}, 1")
    A(f"s_add_u32 s72, s72, s73")
    A(f"s_lshl_b32 s72, s72, 4")
    A(f"s_add_u32 s72, s72, s{S_J}")
    A(f"s_lshl_b32 s72, s72, 10")
    A(f"s_add_u32 s72, s72, {WS_O}")
    A(f"s_add_u32 s73, s72, 16384")
    A(f"v_lshlrev_b32 v{t0}, 4, v0")
    for T in range(2):
        A(f"buffer_store_dwordx4 {v(OF[T],4)}, v{t0}, {s(SRD_WS,4)}, s{72 + T} offen{stf}")

def gelu_pairs(A, pairs, tmp, c0, S_C1, S_ONE):
    g = len(tmp)
    for b in range(0, len(pairs), g):
        grp = list(zip(pairs[b:b+g], tmp))
        for y, t in grp: pk(A, "mul", t, ('p', y), ('p', y))
        for y, t in grp: pk(A, "fma", t, ('p', t), ('s', S_C1), ('p', c0))
        for y, t in grp: pk(A, "mul", t, ('p', t), ('p', y))
        for y, t in grp:
            A(f"v_exp_f32 v{t}, v{t}"); A(f"v_exp_f32 v{t+1}, v{t+1}")
        for y, t in grp: pk(A, "add", t, ('p', t), ('s', S_ONE))
        for y, t in grp:
            A(f"v_rcp_f32 v{t}, v{t}"); A(f"v_rcp_f32 v{t+1}, v{t+1}")
        for y, t in grp: pk(A, "mul", y, ('p', y), ('p', t))

def gelu_consts(A, C0, S_C1, S_ONE):
    c0 = -2 * LOG2E * 0.7978845608028654; c1 = c0 * 0.044715
    A(f"s_mov_b32 s{S_C1}, {fhex(c1)}"); A(f"s_mov_b32 s{S_C1+1}, {fhex(c1)}")
    A(f"s_mov_b32 s{S_ONE}, 1.0"); A(f"s_mov_b32 s{S_ONE+1}, 1.0")
    A(f"v_mov_b32 v{C0}, {fhex(c0)}"); A(f"v_mov_b32 v{C0+1}, {fhex(c0)}")

def epilogue_Z2(A, P, opt):
    stf = opt.get("stflags", " sc1")
    S_C1, S_ONE = 62, 78
    aR, bR, csL, C0 = 20, 28, 36, 44
    TM = [48 + 2 * i for i in range(8)]
    SV, SV2 = 64, 72
    VL16 = 14
    t0, t1, t3 = 4, 5, 7
    gelu_consts(A, C0, S_C1, S_ONE)
    A(f"v_and_b32 v{t0}, 15, v0")
    A(f"v_lshrrev_b32 v{t1}, 4, v0")
    A(f"s_lshl_b32 s72, s{S_RG}, 7")
    A(f"s_add_u32 s72, s72, {LA1 + 64}")
    A(f"v_lshlrev_b32 v{t0}, 2, v{t0}")
    A(f"v_lshlrev_b32 v{t1}, 4, v{t1}")
    A(f"v_add_u32 v{t3}, s72, v{t1}")
    A(f"v_add_u32 v{t0}, {LCS}, v{t0}")
    A(f"v_lshlrev_b32 v{VL16}, 4, v0")
    L = LG(A)
    for T in range(2):
        A(f"ds_read_b128 {v(aR+4*T,4)}, v{t3} offset:{64*T}"); L.issue("a")
        A(f"ds_read_b128 {v(bR+4*T,4)}, v{t3} offset:{64*T+LB1-LA1}"); L.issue("a")
    for u in range(7):
        A(f"ds_read_b32 v{csL+u}, v{t0} offset:{64*u}"); L.issue("a")
    L.wait_all()
    pairs = []; tcyc = 0
    for u in range(7):
        for T in range(2):
            for h in range(2):
                z = zreg(u, T) + 2 * h
                t = TM[tcyc % 8]; tcyc += 1
                pk(A, "mul", t, ('p', bR + 4 * T + 2 * h), ('b', csL + u))
                pk(A, "fma", z, ('p', z), ('p', aR + 4 * T + 2 * h), ('p', t))
                pairs.append(z)
    gelu_pairs(A, pairs, TM[:7], C0, S_C1, S_ONE)
    for T in range(2):
        for h in range(2):
            d1 = SV + 4 * T + 2 * h; d2 = SV2 + 4 * T + 2 * h
            for u in range(7):
                z = zreg(u, T) + 2 * h
                if u == 0:
                    pk(A, "mul", d2, ('p', z), ('p', z))
                elif u == 1:
                    pk(A, "add", d1, ('p', zreg(0, T) + 2 * h), ('p', z))
                    pk(A, "fma", d2, ('p', z), ('p', z), ('p', d2))
                else:
                    pk(A, "add", d1, ('p', d1), ('p', z))
                    pk(A, "fma", d2, ('p', z), ('p', z), ('p', d2))
    W1 = 48
    for n in range(8):
        A(f"v_add_f32_dpp v{W1+n}, v{SV+n}, v{SV+n} row_mirror row_mask:0xf bank_mask:0x3")
    for n in range(8):
        A(f"v_add_f32_dpp v{W1+n}, v{SV2+n}, v{SV2+n} row_mirror row_mask:0xf bank_mask:0xc")
    W2 = 56
    for n in range(4):
        A(f"v_add_f32_dpp v{W2+n}, v{W1+n}, v{W1+n} row_half_mirror row_mask:0xf bank_mask:0x5")
    for n in range(4):
        A(f"v_add_f32_dpp v{W2+n}, v{W1+n+4}, v{W1+n+4} row_half_mirror row_mask:0xf bank_mask:0xa")
    smask(A, 74, lane_mask(lambda g, c: c & 2))
    smask(A, 76, lane_mask(lambda g, c: c & 1))
    W3 = 60
    for n in range(2):
        A(f"v_cndmask_b32 v{W3+n}, v{W2+n}, v{W2+n+2}, s[74:75]")
        A(f"v_cndmask_b32 v{W3+2+n}, v{W2+n+2}, v{W2+n}, s[74:75]")
    for n in range(2):
        A(f"v_add_f32_dpp v{W3+n}, v{W3+2+n}, v{W3+n} quad_perm:[2,3,0,1] row_mask:0xf bank_mask:0xf")
    G = SV
    A(f"v_cndmask_b32 v{G}, v{W3}, v{W3+1}, s[76:77]")
    A(f"v_cndmask_b32 v{G+1}, v{W3+1}, v{W3}, s[76:77]")
    A(f"v_add_f32_dpp v{G}, v{G+1}, v{G} quad_perm:[1,0,3,2] row_mask:0xf bank_mask:0xf")
    A(f"v_mov_b32_dpp v{G+1}, v{G} row_ror:8 row_mask:0xf bank_mask:0xf")
    A(f"v_mov_b32 v{G+2}, s{S_TAG}")
    A(f"v_mov_b32 v{G+3}, s{S_TAG+1}")
    A(f"v_bfe_u32 v{G+4}, v0, 2, 1")
    A(f"v_lshlrev_b32 v{G+4}, 4, v{G+4}")
    A(f"v_lshrrev_b32 v{G+5}, 4, v0")
    A(f"v_lshl_add_u32 v{G+4}, v{G+5}, 2, v{G+4}")
    A(f"v_and_b32 v{G+5}, 3, v0")
    A(f"v_add_u32 v{G+4}, v{G+4}, v{G+5}")
    A(f"v_lshlrev_b32 v{G+4}, 4, v{G+4}")
    A(f"s_lshl_b32 s72, s{S_I}, 2")
    A(f"s_add_u32 s72, s72, s{S_RG}")
    A(f"s_lshl_b32 s73, s72, 12")
    A(f"s_add_u32 s73, s73, {WS_ST2}")
    A(f"s_lshl_b32 s72, s{S_G}, 9")
    A(f"s_add_u32 s72, s72, s73")
    smask(A, 74, lane_mask(lambda g, c: c < 8))
    A("s_mov_b64 exec, s[74:75]")
    A(f"buffer_store_dwordx4 {v(G,4)}, v{G+4}, {s(SRD_WS,4)}, s72 offen sc1")
    A("s_mov_b64 exec, -1")
    stamp(A, 4)
    PR = [80, 84, 88, 92]
    A(f"s_mov_b32 s{S_PC}, {POLL_MAX}")
    A.label(f"{P}_again")
    for q in range(4):
        A(f"buffer_load_dwordx4 {v(PR[q],4)}, v{VL16}, {s(SRD_WS,4)}, s73 offen offset:{1024*q} sc1")
    A("s_waitcnt vmcnt(0)")
    for q in range(4):
        A(f"v_cmp_eq_u32 vcc, s{S_TAG}, v{PR[q]+2}")
        A(f"v_cmp_eq_u32 s[76:77], s{S_TAG+1}, v{PR[q]+3}")
        A(f"s_and_b64 vcc, vcc, s[76:77]")
        if q == 0: A("s_mov_b64 s[80:81], vcc")
        else: A("s_and_b64 s[80:81], s[80:81], vcc")
    A("s_cmp_eq_u64 s[80:81], -1")
    A(f"s_cbranch_scc1 {P}_ok")
    A(f"s_sub_u32 s{S_PC}, s{S_PC}, 1")
    A(f"s_cmp_lg_u32 s{S_PC}, 0")
    A(f"s_cbranch_scc1 {P}_again")
    A.label(f"{P}_ok")
    dbgst(A, 14, SRD_DBG)
    stamp(A, 6)
    a_, b_ = PR[0], PR[1]
    pk(A, "add", PR[0], ('p', PR[0]), ('p', PR[1]))
    pk(A, "add", PR[2], ('p', PR[2]), ('p', PR[3]))
    pk(A, "add", 52, ('p', PR[0]), ('p', PR[2]))
    A("v_mov_b32 v54, v52"); A("v_mov_b32 v55, v53")
    A("v_permlane32_swap_b32 v52, v54"); A("v_permlane32_swap_b32 v53, v55")
    pk(A, "add", 52, ('p', 52), ('p', 54))
    A(f"v_mul_f32 v52, {fhex(1/896)}, v52")
    A(f"v_mul_f32 v53, {fhex(1/896)}, v53")
    A("v_fma_f32 v53, -v52, v52, v53")
    A("v_max_f32 v53, 0, v53")
    A(f"v_add_f32 v53, {fhex(1e-5)}, v53")
    A("v_rsq_f32 v53, v53")
    A("v_mul_f32 v52, v52, v53")
    A("v_sub_f32 v52, 0, v52")
    A("v_and_b32 v54, 31, v0")
    A("v_lshlrev_b32 v54, 2, v54")
    A(f"s_lshl_b32 s72, s{S_W}, 8")
    A(f"s_add_u32 s72, s72, {LSC}")
    A("v_add_u32 v54, s72, v54")
    A("ds_write_b32 v54, v53")
    A("ds_write_b32 v54, v52 offset:128")
    A("v_lshrrev_b32 v55, 4, v0")
    A("v_lshlrev_b32 v55, 4, v55")
    A("v_add_u32 v55, s72, v55")
    A("s_waitcnt lgkmcnt(0)")
    for T in range(2):
        A(f"ds_read_b128 {v(aR+4*T,4)}, v55 offset:{64*T}")
        A(f"ds_read_b128 {v(bR+4*T,4)}, v55 offset:{128+64*T}")
    A(f"s_lshl_b32 s72, s{S_I}, 2")
    A(f"s_add_u32 s72, s72, s{S_RG}")
    A(f"s_mul_i32 s72, s72, {56*1024}")
    A(f"s_mul_i32 s74, s{S_G}, {7*1024}")
    A(f"s_add_u32 s72, s72, s74")
    A(f"s_add_u32 s72, s72, {WS_Z2N}")
    A(f"s_add_u32 s73, s72, 4096")
    A("s_waitcnt lgkmcnt(0)")
    for u in range(7):
        for T in range(2):
            for h in range(2):
                z = zreg(u, T) + 2 * h
                pk(A, "fma", z, ('p', z), ('p', aR + 4 * T + 2 * h), ('p', bR + 4 * T + 2 * h))
        z = zreg(u, 0)
        cvt2(A, z, z, z + 1); cvt2(A, z + 1, z + 2, z + 3); cvt2(A, z + 2, z + 4, z + 5); cvt2(A, z + 3, z + 6, z + 7)
        A(f"buffer_store_dwordx4 {v(z,4)}, v{VL16}, {s(SRD_WS,4)}, s{72 + (u >> 2)} offen offset:{1024*(u&3)}{stf}")

def epilogue_Z1(A, P, opt):
    stf = opt.get("stflags", " sc1")
    S_C1, S_ONE = 62, 78
    aL, bL, csZ1, C0 = 8, 10, 12, 44
    TM = [48 + 2 * i for i in range(8)]
    VL8 = 46
    t0, t1, t2 = 4, 5, 6
    gelu_consts(A, C0, S_C1, S_ONE)
    A(f"v_and_b32 v{t0}, 15, v0")
    A(f"v_lshrrev_b32 v{t1}, 4, v0")
    A(f"s_lshl_b32 s72, s{S_RG}, 7")
    A(f"s_add_u32 s72, s72, {LA1 + 64}")
    A(f"v_lshlrev_b32 v{t0}, 2, v{t0}")
    A(f"v_lshlrev_b32 v{t1}, 4, v{t1}")
    A(f"v_add_u32 v{t2}, s72, v{t0}")
    A(f"v_add_u32 v{t1}, {LCS + 7*64}, v{t1}")
    A(f"v_lshlrev_b32 v{VL8}, 3, v0")
    L = LG(A)
    for T in range(2):
        A(f"ds_read_b32 v{aL+T}, v{t2} offset:{64*T}"); L.issue("a")
        A(f"ds_read_b32 v{bL+T}, v{t2} offset:{64*T+LB1-LA1}"); L.issue("a")
    for u in range(7):
        A(f"ds_read_b128 {v(csZ1+4*u,4)}, v{t1} offset:{64*u}"); L.issue("a")
    A(f"s_lshl_b32 s74, s{S_I}, 3")
    A(f"s_lshl_b32 s75, s{S_RG}, 1")
    A(f"s_add_u32 s74, s74, s75")
    A(f"s_mul_i32 s74, s74, {56*512}")
    A(f"s_mul_i32 s75, s{S_G}, {7*512}")
    A(f"s_add_u32 s74, s74, s75")
    A(f"s_add_u32 s74, s74, {WS_Z1}")
    A(f"s_add_u32 s75, s74, {56*512}")
    L.wait_all()
    tcyc = 0
    for T in range(2):
        pairs = []
        for u in range(7):
            for h in range(2):
                z = zreg(u, T) + 2 * h
                t = TM[tcyc % 8]; tcyc += 1
                pk(A, "mul", t, ('p', csZ1 + 4 * u + 2 * h), ('b', bL + T))
                pk(A, "fma", z, ('p', z), ('b', aL + T), ('p', t))
                pairs.append(z)
        gelu_pairs(A, pairs, TM[:7], C0, S_C1, S_ONE)
        for u in range(7):
            z = zreg(u, T)
            cvt2(A, z, z, z + 1); cvt2(A, z + 1, z + 2, z + 3)
            A(f"buffer_store_dwordx2 {v(z,2)}, v{VL8}, {s(SRD_WS,4)}, s{74 + T} offen offset:{u*512}{stf}")
    stamp(A, 5)

def compute_p1(A, typ, par, opt):
    P = f"p1{typ}c{par}"
    isA = typ == "A"
    A("s_waitcnt lgkmcnt(0)")
    srd(A, SRD_X, P_X, 2048 * 896)
    if isA: srd(A, SRD_W, P_WQKV, 448 * 2688)
    else: srd(A, SRD_W, P_WIN, 448 * 3584)
    srd(A, SRD_WS, P_WS, WS_BYTES)
    srd(A, SRD_DBG, P_DBG, 256)
    dbgst(A, 2, SRD_DBG, neg=True); dbgst(A, 3, SRD_DBG)
    A(f"s_and_b32 s{S_RG}, s{S_W}, 3")
    A(f"s_lshr_b32 s{S_J}, s{S_W}, 2")
    A(f"s_lshl_b32 s64, s{S_G}, 1")
    A(f"s_add_u32 s{S_J}, s{S_J}, s64")
    A("v_mov_b32 v7, 0")
    A(f"s_or_b32 s72, s2, s{S_W}")
    A("s_cmp_lg_u32 s72, 0")
    A(f"s_cbranch_scc1 {P}_non")
    A("s_memrealtime s[74:75]")
    A("s_waitcnt lgkmcnt(0)")
    A("s_or_b32 s74, s74, 1")
    A("v_mov_b32 v8, s74"); A("v_mov_b32 v9, s75")
    A("s_mov_b64 exec, 1")
    A(f"buffer_store_dwordx2 v[8:9], v7, {s(SRD_DBG,4)}, 0 offen sc1")
    A("s_mov_b64 exec, -1")
    A.label(f"{P}_non")
    lo = isA or par == 0
    hi = isA or par == 1
    def split(flo, fhi, tagn):
        if isA:
            A(f"s_cmp_ge_u32 s{S_W}, 4")
            A(f"s_cbranch_scc1 {P}_{tagn}h")
            flo()
            A(f"s_branch {P}_{tagn}e")
            A.label(f"{P}_{tagn}h")
            fhi()
            A.label(f"{P}_{tagn}e")
        elif par == 0: flo()
        else: fhi()
    split(lambda: cols_load(A, typ, f"{P}_cl"), lambda: rows_load(A), "ld")
    if lo:
        A(f"s_cmp_lg_u32 s{S_W}, 0")
        A(f"s_cbranch_scc1 {P}_nopoll")
        A(f"s_mov_b32 s{S_PC}, {POLL_MAX}")
        A.label(f"{P}_poll")
        A(f"buffer_load_dwordx2 v[8:9], v7, {s(SRD_DBG,4)}, 0 offen sc1")
        A("s_waitcnt vmcnt(0)")
        A("v_readfirstlane_b32 s74, v8")
        A(f"s_sub_u32 s{S_PC}, s{S_PC}, 1")
        A(f"s_cmp_eq_u32 s{S_PC}, 0")
        A(f"s_cbranch_scc1 {P}_pollx")
        A("s_cmp_eq_u32 s74, 0")
        A(f"s_cbranch_scc1 {P}_poll")
        A.label(f"{P}_pollx")
        A(f"v_mov_b32 v10, {LNON}")
        A("ds_write_b64 v10, v[8:9]")
        A.label(f"{P}_nopoll")
    A("s_waitcnt vmcnt(0)")
    split(lambda: cols_compute(A, typ, f"{P}_cc"), lambda: rows_compute(A), "cp")
    compute_addr(A, typ)
    def hook():
        A(f"v_mov_b32 v6, {LNON}")
        A("ds_read_b64 v[6:7], v6")
        A("s_waitcnt lgkmcnt(0)")
        A(f"v_readfirstlane_b32 s{S_TAG}, v6")
        A(f"v_readfirstlane_b32 s{S_TAG+1}, v7")
        split(lambda: cols_publish(A, typ, f"{P}_cq"), lambda: rows_publish(A), "pb")
    main_loop(A, typ, par, P, hook, opt)
    if isA: epilogue_A(A, P, opt)
    elif par == 0: epilogue_Z2(A, P, opt)
    else: epilogue_Z1(A, P, opt)
    if DBGST["on"]:
        A("s_waitcnt vmcnt(0)")
        dbgst(A, 11 if isA else (12 if par == 0 else 13), SRD_DBG)
    stamp(A, 7)

def stamp_flush12(A, kidx=0):
    if not STAMP["on"]: return
    A("s_waitcnt vmcnt(0)")
    stamp(A, 61)
    A("s_memrealtime s[98:99]")
    A("s_waitcnt lgkmcnt(0)")
    A("v_writelane_b32 v166, s98, 62")
    if STAMP.get("out"):
        srd(A, 40, P_OUT, 2048 * 896)
        A(f"s_mul_i32 s96, s2, 12")
        A(f"s_add_u32 s96, s96, s{S_W}")
        A(f"s_lshl_b32 s96, s96, 9")
        A("v_lshlrev_b32 v167, 3, v0")
        for c in range(3):
            A(f"v_bfe_u32 v165, v166, {11*c}, 11")
            A(f"buffer_store_short v165, v167, s[40:43], s96 offen offset:{2*c}")
            A("s_waitcnt vmcnt(0)")
        return
    A(f"s_lshl_b32 s96, s2, 4")
    A(f"s_add_u32 s96, s96, s{S_W}")
    A(f"s_lshl_b32 s96, s96, 8")
    A(f"s_add_u32 s96, s96, {WS_DBG + kidx*0x100000}")
    A("v_lshlrev_b32 v167, 2, v0")
    A(f"buffer_store_dword v166, v167, {s(SRD_WS,4)}, s96 offen")

def gen_k1(opt, kidx=0):
    A = Asm()
    prologue(A, "k1_end")
    stamp_init(A)
    wg_map(A)
    A(f"s_cmp_ge_u32 s{S_W}, 8")
    A("s_cbranch_scc1 k1_load")
    A(f"s_cmp_ge_u32 s{S_C}, 8")
    A("s_cbranch_scc1 k1_cB")
    compute_p1(A, "A", 0, opt)
    stamp_flush12(A, kidx)
    A("s_endpgm")
    A.label("k1_cB")
    A(f"s_cmp_ge_u32 s{S_W}, 4")
    A("s_cbranch_scc1 k1_cB1")
    compute_p1(A, "B", 0, opt)
    stamp_flush12(A, kidx)
    A("s_endpgm")
    A.label("k1_cB1")
    compute_p1(A, "B", 1, opt)
    stamp_flush12(A, kidx)
    A("s_endpgm")
    A.label("k1_load")
    for typ in "AB":
        if typ == "A":
            A(f"s_cmp_ge_u32 s{S_C}, 8")
            A("s_cbranch_scc1 k1_lB")
        else:
            A.label("k1_lB")
        for ell in range(4):
            if ell < 3:
                A(f"s_cmp_lg_u32 s{S_W}, {8+ell}")
                A(f"s_cbranch_scc1 k1_l{typ}{ell+1}")
            loader_p1(A, typ, ell, opt)
            stamp_flush12(A, kidx)
            A("s_endpgm")
            if ell < 3: A.label(f"k1_l{typ}{ell+1}")
    A.label("k1_end")
    A("s_endpgm")
    return ("k1_kernel", A.text(), 256, 768, F_LDS, 168)
```

```python
from gl import *

LX, LW = 0, 55296
XSA, XSB, WSA, WSB = 18432, 16384, 24576, 28672
LA1 = 153600; LB1 = LA1 + 576; LCS = 154752; LNON = 155648; LSC = 155712
F_LDS = 163840
POLL_MAX = 40000
S_W, S_I, S_C, S_G, S_PC, S_J, S_RG, S_LC, S_SL = 3, 52, 53, 54, 55, 56, 57, 58, 59
S_TAG = 60
T4 = (64, 65, 66, 67)
S_TB, S_FB, S_KH, S_TB3, S_DB, S_FLG = 4, 5, 6, 7, 30, 31
SRD_WSP, SRD_WO, SRD_WOUT, SRD_BSP, SRD_OUT = 36, 40, 32, 36, 40
WRING, ZRING, WSL, ZSL = 0, 81920, 16384, 14336
WOIMG = 81920
RB0, RB1 = 16384, 96256
RP3 = 272
WS_FZ2 = WS_FZ
WS_FZ1 = WS_FZ + 0x1000
WS_FO2 = WS_FZ + 0x2000
WS_FU2 = WS_FZ + 0x4000
SRD_X, SRD_W, SRD_WS, SRD_DBG = 32, 36, 44, 48
BIG = 0x7ff00000

class LG(Lgkm):
    def issue(self, tag): self.p.append(tag)
    def wait(self, tag):
        idx = [i for i, t in enumerate(self.p) if t == tag]
        if not idx: return
        idx = idx[-1]
        n = min(len(self.p) - 1 - idx, 15)
        self.A(f"s_waitcnt lgkmcnt({n})")
        self.p = self.p[len(self.p) - n:] if n else []

def cvt2(A, d, lo, hi): A(f"v_cvt_pk_bf16_f32 v{d}, v{lo}, v{hi}")
def lane_mask(fn):
    m = 0
    for l in range(64):
        if fn(l >> 4, l & 15): m |= 1 << l
    return m
def smask(A, sr, m):
    A(f"s_mov_b32 s{sr}, {hex(m & 0xffffffff)}")
    A(f"s_mov_b32 s{sr+1}, {hex(m >> 32)}")

def wg_map(A):
    t0 = 64
    A(f"s_lshr_b32 s{t0}, s2, 3")
    A(f"s_and_b32 s{S_G}, s2, 1")
    A(f"s_lshl_b32 s{S_G}, s{S_G}, 2")
    A(f"s_and_b32 s{S_I}, s{t0}, 3")
    A(f"s_add_u32 s{S_G}, s{S_G}, s{S_I}")
    A(f"s_bfe_u32 s{S_I}, s{t0}, 0x10002")
    A(f"s_lshl_b32 s{S_I}, s{S_I}, 3")
    A(f"s_add_u32 s{S_C}, s{S_G}, s{S_I}")
    A(f"s_lshr_b32 s{t0}, s{t0}, 3")
    A(f"s_bfe_u32 s{S_I}, s2, 0x20001")
    A(f"s_lshl_b32 s{S_I}, s{S_I}, 2")
    A(f"s_add_u32 s{S_I}, s{S_I}, s{t0}")
    A(f"s_bfe_u32 s{S_KH}, s2, 0x10002")
    A(f"s_bfe_u32 s{t0}, s2, 0x20003")
    A(f"s_and_b32 s{S_TB}, s2, 3")
    A(f"s_lshl_b32 s{S_TB}, s{S_TB}, 2")
    A(f"s_add_u32 s{S_TB}, s{S_TB}, s{t0}")
    A(f"s_lshr_b32 s{S_FB}, s2, 5")
    A(f"s_and_b32 s{S_TB3}, s2, 7")
    A(f"s_lshl_b32 s{S_TB3}, s{S_TB3}, 2")
    A(f"s_add_u32 s{S_TB3}, s{S_TB3}, s{t0}")
    A(f"s_mov_b32 s{S_DB}, s{S_FB}")

PRB = 56
def rows_load(A):
    R = PRB; t0 = 64; va, vb = R + 24, R + 25
    A(f"s_lshl_b32 s{t0}, s{S_I}, 4")
    A(f"s_add_u32 s{t0}, s{t0}, s{S_C}")
    A(f"s_lshl_b32 s{t0}, s{t0}, 2")
    A(f"s_add_u32 s{t0}, s{t0}, s{S_RG}")
    A(f"s_mul_i32 s{t0}, s{t0}, 1792")
    A(f"v_lshlrev_b32 v{va}, 4, v0")
    A(f"v_mov_b32 v{vb}, {hex(BIG)}")
    A(f"v_cmp_gt_u32 vcc, 56, v0")
    A(f"v_cndmask_b32 v{va}, v{vb}, v{va}, vcc")
    A(f"buffer_load_dwordx4 {v(R,4)}, v{va}, {s(SRD_X,4)}, s{t0} offen")
    A(f"buffer_load_dwordx4 {v(R+4,4)}, v{va}, {s(SRD_X,4)}, s{t0} offen offset:896")

def rows_compute(A):
    R = PRB; ones = R + 24
    A(f"v_mov_b32 v{ones}, 0x3f803f80")
    S_ = [R + 30, R + 31, R + 32, R + 33]
    for k in range(4): A(f"v_mov_b32 v{S_[k]}, 0")
    for d in range(4):
        for rr in range(2):
            x = R + 4 * rr + d
            A(f"v_dot2_f32_bf16 v{S_[2*rr]}, v{x}, v{ones}, v{S_[2*rr]}")
            A(f"v_dot2_f32_bf16 v{S_[2*rr+1]}, v{x}, v{x}, v{S_[2*rr+1]}")
    dpp_row_allreduce(A, S_)
    allreduce_rows(A, "add", S_, [R + 34, R + 35, R + 36, R + 37])
    A(f"v_cmp_eq_u32 vcc, 1, v0")
    A(f"v_cndmask_b32 v{S_[0]}, v{S_[0]}, v{S_[2]}, vcc")
    A(f"v_cndmask_b32 v{S_[1]}, v{S_[1]}, v{S_[3]}, vcc")
    A(f"v_mul_f32 v{S_[0]}, {fhex(1/448)}, v{S_[0]}")
    A(f"v_mul_f32 v{S_[1]}, {fhex(1/448)}, v{S_[1]}")
    A(f"v_fma_f32 v{S_[1]}, -v{S_[0]}, v{S_[0]}, v{S_[1]}")
    A(f"v_max_f32 v{S_[1]}, 0, v{S_[1]}")
    A(f"v_add_f32 v{S_[1]}, {fhex(1e-5)}, v{S_[1]}")
    A(f"v_rsq_f32 v{R+26}, v{S_[1]}")
    A(f"v_mul_f32 v{R+27}, v{S_[0]}, v{R+26}")
    A(f"v_sub_f32 v{R+27}, 0, v{R+27}")

def rows_publish(A):
    R = PRB; t0 = 64; G = R + 30
    A(f"s_lshl_b32 s{t0}, s{S_I}, 4")
    A(f"s_add_u32 s{t0}, s{t0}, s{S_C}")
    A(f"s_lshl_b32 s{t0}, s{t0}, 2")
    A(f"s_add_u32 s{t0}, s{t0}, s{S_RG}")
    A(f"s_lshl_b32 s{t0}, s{t0}, 5")
    A(f"s_add_u32 s{t0}, s{t0}, {WS_ST1}")
    A(f"v_mov_b32 v{G}, v{R+26}")
    A(f"v_mov_b32 v{G+1}, v{R+27}")
    A(f"v_mov_b32 v{G+2}, s{S_TAG}")
    A(f"v_mov_b32 v{G+3}, s{S_TAG+1}")
    A(f"v_lshlrev_b32 v{R+34}, 4, v0")
    A(f"s_mov_b64 exec, 3")
    A(f"buffer_store_dwordx4 {v(G,4)}, v{R+34}, {s(SRD_WS,4)}, s{t0} offen sc1")
    A(f"s_mov_b64 exec, -1")

def cols_load(A, typ, skip):
    R = PRB; t0, t1, t2, t3 = T4; va, vb = R + 24, R + 25
    nt = 12 if typ == "A" else 14
    A(f"s_cmp_ge_u32 s{S_I}, {nt}")
    A(f"s_cbranch_scc1 {skip}")
    if typ == "A":
        stride = 2688
        A(f"s_lshr_b32 s{t0}, s{S_I}, 2")
        A(f"s_mul_i32 s{t0}, s{t0}, 896")
        A(f"s_mul_i32 s{t1}, s{S_G}, 112")
        A(f"s_add_u32 s{t0}, s{t0}, s{t1}")
        A(f"s_bfe_u32 s{t1}, s{S_I}, 0x10001")
        A(f"s_mul_i32 s{t1}, s{t1}, 56")
        A(f"s_add_u32 s{t0}, s{t0}, s{t1}")
        A(f"s_and_b32 s{t1}, s{S_I}, 1")
        A(f"s_lshl_b32 s{t1}, s{t1}, 5")
        A(f"s_add_u32 s{t0}, s{t0}, s{t1}")
    else:
        stride = 3584
        A(f"s_mul_i32 s{t0}, s{S_G}, 224")
        A(f"s_lshl_b32 s{t1}, s{S_I}, 5")
        A(f"s_add_u32 s{t0}, s{t0}, s{t1}")
        A(f"s_cmp_lt_u32 s{S_I}, 7")
        csel(A, t1, 1792, -224)
        A(f"s_add_u32 s{t0}, s{t0}, s{t1}")
    A(f"s_mul_i32 s{t2}, s{S_RG}, {112*stride}")
    A(f"s_add_u32 s{t0}, s{t0}, s{t2}")
    A(f"v_lshrrev_b32 v{va}, 1, v0")
    A(f"v_mul_u32_u24 v{va}, {stride}, v{va}")
    A(f"v_and_b32 v{vb}, 1, v0")
    A(f"v_lshl_add_u32 v{va}, v{vb}, 4, v{va}")
    for m in range(4):
        if m == 3:
            A(f"v_mov_b32 v{vb}, {hex(BIG)}")
            A(f"v_cmp_gt_u32 vcc, 32, v0")
            A(f"v_cndmask_b32 v{va}, v{vb}, v{va}, vcc")
        A(f"buffer_load_dwordx4 {v(R+8+4*m,4)}, v{va}, {s(SRD_W,4)}, s{t0} offen")
        if m < 3: A(f"s_add_u32 s{t0}, s{t0}, {32*stride}")
    A.label(skip)

def cols_compute(A, typ, skip):
    R = PRB
    nt = 12 if typ == "A" else 14
    A(f"s_cmp_ge_u32 s{S_I}, {nt}")
    A(f"s_cbranch_scc1 {skip}")
    lo, hi = R + 0, R + 1
    A(f"v_mov_b32 v{lo}, 0x00003f80")
    A(f"v_mov_b32 v{hi}, 0x3f800000")
    acc = [R + 30 + k for k in range(8)]
    for k in range(8): A(f"v_mov_b32 v{acc[k]}, 0")
    for m in range(4):
        for d in range(4):
            x = R + 8 + 4 * m + d
            A(f"v_dot2_f32_bf16 v{acc[2*d]}, v{x}, v{lo}, v{acc[2*d]}")
            A(f"v_dot2_f32_bf16 v{acc[2*d+1]}, v{x}, v{hi}, v{acc[2*d+1]}")
    dpp_row_allreduce(A, acc, steps=(8, 4, 2))
    allreduce_rows(A, "add", acc, [R + 2 + k for k in range(8)])
    A(f"v_lshrrev_b32 v{R+2}, 1, v0")
    A(f"v_mov_b32 v{R+28}, v{acc[0]}")
    A(f"v_mov_b32 v{R+29}, v{acc[1]}")
    for d in range(1, 4):
        A(f"v_cmp_eq_u32 vcc, {d}, v{R+2}")
        A(f"v_cndmask_b32 v{R+28}, v{R+28}, v{acc[2*d]}, vcc")
        A(f"v_cndmask_b32 v{R+29}, v{R+29}, v{acc[2*d+1]}, vcc")
    A.label(skip)

def cols_publish(A, typ, skip):
    R = PRB; t0 = 64
    nt = 12 if typ == "A" else 14
    A(f"s_cmp_ge_u32 s{S_I}, {nt}")
    A(f"s_cbranch_scc1 {skip}")
    A(f"s_mul_i32 s{t0}, s{S_C}, 14")
    A(f"s_add_u32 s{t0}, s{t0}, s{S_I}")
    A(f"s_lshl_b32 s{t0}, s{t0}, 2")
    A(f"s_add_u32 s{t0}, s{t0}, s{S_RG}")
    A(f"s_lshl_b32 s{t0}, s{t0}, 7")
    A(f"s_add_u32 s{t0}, s{t0}, {WS_CS}")
    G2 = R + 36
    A(f"v_mov_b32 v{G2}, v{R+28}")
    A(f"v_mov_b32 v{G2+1}, v{R+29}")
    A(f"v_mov_b32 v{G2+2}, s{S_TAG}")
    A(f"v_mov_b32 v{G2+3}, s{S_TAG+1}")
    A(f"v_and_b32 v{R+35}, 1, v0")
    A(f"v_lshrrev_b32 v{R+34}, 1, v0")
    A(f"v_lshl_add_u32 v{R+34}, v{R+35}, 2, v{R+34}")
    A(f"v_lshlrev_b32 v{R+34}, 4, v{R+34}")
    A(f"s_mov_b64 exec, 0xff")
    A(f"buffer_store_dwordx4 {v(G2,4)}, v{R+34}, {s(SRD_WS,4)}, s{t0} offen sc1")
    A(f"s_mov_b64 exec, -1")
    A.label(skip)

def kperm16(A, rho, out, t):
    A(f"v_and_b32 v{out}, 3, v{rho}")
    A(f"v_lshrrev_b32 v{t}, 2, v{rho}")
    A(f"v_lshl_add_u32 v{out}, v{t}, 3, v{out}")

def voff_wq(A, beta, dst, t, s_col):
    n, rho, c, k = t
    A(f"v_add_u32 v{n}, {64*beta}, v0")
    m = magic_div(24, 384)
    A(f"v_mul_u32_u24 v{rho}, {m}, v{n}")
    A(f"v_lshrrev_b32 v{rho}, 16, v{rho}")
    A(f"v_mul_u32_u24 v{c}, 24, v{rho}")
    A(f"v_sub_u32 v{c}, v{n}, v{c}")
    kperm16(A, rho, k, n)
    A(f"v_mul_u32_u24 v{dst}, 2688, v{k}")
    A(f"v_bfe_u32 v{k}, v{rho}, 1, 2")
    A(f"v_lshrrev_b32 v{n}, 1, v{c}")
    A(f"v_xor_b32 v{n}, v{n}, v{k}")
    A(f"v_lshrrev_b32 v{k}, 2, v{n}")
    A(f"v_mul_u32_u24 v{k}, 896, v{k}")
    A(f"v_add_u32 v{dst}, v{dst}, v{k}")
    A(f"v_bfe_u32 v{k}, v{n}, 1, 1")
    A(f"v_mul_u32_u24 v{k}, 56, v{k}")
    A(f"v_add_u32 v{dst}, v{dst}, v{k}")
    A(f"v_and_b32 v{n}, 1, v{n}")
    A(f"v_lshl_add_u32 v{dst}, v{n}, 5, v{dst}")
    A(f"v_and_b32 v{c}, 1, v{c}")
    A(f"v_lshl_add_u32 v{dst}, v{c}, 4, v{dst}")
    A(f"v_add_u32 v{dst}, s{s_col}, v{dst}")

def voff_wz(A, beta, dst, t, s_col):
    n, rho, c, k = t
    A(f"v_add_u32 v{n}, {64*beta}, v0")
    m = magic_div(28, 448)
    A(f"v_mul_u32_u24 v{rho}, {m}, v{n}")
    A(f"v_lshrrev_b32 v{rho}, 16, v{rho}")
    A(f"v_mul_u32_u24 v{c}, 28, v{rho}")
    A(f"v_sub_u32 v{c}, v{n}, v{c}")
    kperm16(A, rho, k, n)
    A(f"v_mul_u32_u24 v{dst}, 3584, v{k}")
    A(f"v_bfe_u32 v{k}, v{rho}, 2, 1")
    A(f"v_lshrrev_b32 v{n}, 1, v{c}")
    A(f"v_xor_b32 v{n}, v{n}, v{k}")
    A(f"v_lshl_add_u32 v{dst}, v{n}, 5, v{dst}")
    A(f"v_mov_b32 v{k}, 1792")
    A(f"v_mov_b32 v{rho}, -224")
    A(f"v_cmp_gt_u32 vcc, 7, v{n}")
    A(f"v_cndmask_b32 v{k}, v{rho}, v{k}, vcc")
    A(f"v_add_u32 v{dst}, v{dst}, v{k}")
    A(f"v_and_b32 v{c}, 1, v{c}")
    A(f"v_lshl_add_u32 v{dst}, v{c}, 4, v{dst}")
    A(f"v_add_u32 v{dst}, s{s_col}, v{dst}")

DK = [0, 4, 32, 36]
def loader_p1(A, typ, ell, opt):
    P = f"p1{typ}l{ell}"
    isA = typ == "A"
    XS, WS_ = (XSA, WSA) if isA else (XSB, WSB)
    stride = 2688 if isA else 3584
    NB = 6 if isA else 7
    voff = voff_wq if isA else voff_wz
    t = (20, 21, 22, 23)
    A(f"s_mul_i32 s68, s{S_G}, {112 if isA else 224}")
    pieces = []
    wb = {}
    nxt = [8]
    def base(b):
        if b not in wb:
            wb[b] = nxt[0]; nxt[0] += 1
            voff(A, b, wb[b], t, 68)
        return wb[b]
    def wp(b, ms):
        r = base(b)
        for m in ms: pieces.append(("w", r, DK[m] * stride, (NB * m + b) * 1024))
    if ell < 2:
        A(f"v_lshrrev_b32 v20, 4, v0")
        A(f"v_add_u32 v20, {4*ell}, v20")
        A(f"v_and_b32 v21, 7, v0")
        A(f"v_xor_b32 v20, v20, v21")
        A(f"v_and_b32 v20, 7, v20")
        A(f"v_lshlrev_b32 v20, 4, v20")
        A(f"v_lshrrev_b32 v21, 3, v0")
        A(f"s_lshl_b32 s72, s{S_I}, 7")
        A(f"s_add_u32 s72, s72, {8*ell}")
        A(f"v_add_u32 v21, s72, v21")
        A(f"v_mul_u32_u24 v9, 896, v21")
        A(f"v_add_u32 v9, v9, v20")
        nxt[0] = 10
        if isA:
            A(f"v_subrev_u32 v21, 16, v21")
            A(f"v_max_i32 v21, 0, v21")
            A(f"v_mul_u32_u24 v8, 896, v21")
            A(f"v_add_u32 v8, v8, v20")
            for m in range(9):
                p = ell + 2 * m
                pieces.append(("x", 8 if m == 0 else 9, 0 if m == 0 else (m - 1) * 14336, p * 1024))
            wp(ell, (0, 1))
        else:
            for m in range(8):
                pieces.append(("x", 9, m * 14336, (ell + 2 * m) * 1024))
            wp(ell, (0, 1, 2))
    elif isA:
        if ell == 2: wp(2, range(4)); wp(3, range(4)); wp(0, (2, 3))
        else: wp(4, range(4)); wp(5, range(4)); wp(1, (2, 3))
    else:
        if ell == 2: wp(2, range(4)); wp(3, range(4)); wp(0, (3,)); wp(1, (3,)); wp(6, (0,))
        else: wp(4, range(4)); wp(5, range(4)); wp(6, (1, 2, 3))
    npc = len(pieces)
    A("s_waitcnt lgkmcnt(0)")
    srd(A, SRD_X, P_X, 2048 * 896)
    if isA: srd(A, SRD_W, P_WQKV, 448 * 2688)
    else: srd(A, SRD_W, P_WIN, 448 * 3584)
    srd(A, SRD_WS, P_WS, WS_BYTES)
    def issue(S_):
        if opt.get("nodma") and S_ >= 3: return
        sl = S_ % 3
        for kind, vr, so, lo in pieces:
            b, ss, step, sr = (LX, XS, 128, SRD_X) if kind == "x" else (LW, WS_, 64 * stride, SRD_W)
            A(f"s_mov_b32 m0, {b + sl * ss + lo}")
            A(f"s_mov_b32 s73, {S_ * step + so}")
            A(f"buffer_load_dwordx4 v{vr}, {s(sr,4)}, s73 offen lds")
    nt = 12 if isA else 14
    def table_loads():
        if ell < 3:
            A(f"s_lshl_b32 s72, s{S_I}, 7")
            A(f"s_add_u32 s72, s72, {64*ell}")
            A(f"v_add_u32 v24, s72, v0")
            A(f"v_subrev_u32 v24, 16, v24")
            A(f"v_max_i32 v24, 0, v24")
            A(f"v_lshlrev_b32 v24, 4, v24")
            if ell == 2:
                A(f"s_lshl_b32 s72, s{S_I}, 7")
                A(f"s_add_u32 s72, s72, 127")
                A(f"s_lshl_b32 s72, s72, 4")
                A(f"v_min_u32 v24, s72, v24")
            A(f"buffer_load_dwordx4 v[28:31], v24, {s(SRD_WS,4)}, 0 offen sc1")
        if ell >= 2:
            A(f"v_add_u32 v25, {64*(ell-2)}, v0")
            A(f"v_lshrrev_b32 v26, 3, v25")
            A(f"v_min_u32 v26, {nt-1}, v26")
            A(f"s_mul_i32 s72, s{S_C}, 14")
            A(f"v_add_u32 v26, s72, v26")
            A(f"v_lshlrev_b32 v26, 9, v26")
            A(f"v_and_b32 v25, 7, v25")
            A(f"v_lshl_add_u32 v26, v25, 4, v26")
            A(f"s_mov_b32 s72, {WS_CS}")
            for q in range(4):
                A(f"buffer_load_dwordx4 {v(32+4*q,4)}, v26, {s(SRD_WS,4)}, s72 offen offset:{128*q} sc1")
    def table_check(fail):
        regs = ([28] if ell < 3 else []) + ([32, 36, 40, 44] if ell >= 2 else [])
        first = True
        for r in regs:
            A(f"v_cmp_eq_u32 vcc, s{S_TAG}, v{r+2}")
            A(f"v_cmp_eq_u32 s[74:75], s{S_TAG+1}, v{r+3}")
            A(f"s_and_b64 vcc, vcc, s[74:75]")
            if first: A(f"s_mov_b64 s[76:77], vcc")
            else: A(f"s_and_b64 s[76:77], s[76:77], vcc")
            first = False
        A(f"s_cmp_eq_u64 s[76:77], -1")
        A(f"s_cbranch_scc0 {fail}")
    def table_write():
        if ell < 3:
            A(f"v_lshlrev_b32 v24, 2, v0")
            A(f"v_add_u32 v24, {LA1 + 256*ell}, v24")
            if ell == 2: A("s_mov_b64 exec, 0xffff")
            A(f"ds_write_b32 v24, v28")
            A(f"ds_write_b32 v24, v29 offset:{LB1-LA1}")
            if ell == 2: A("s_mov_b64 exec, -1")
        if ell >= 2:
            pk(A, "add", 32, ('p', 32), ('p', 36))
            pk(A, "add", 40, ('p', 40), ('p', 44))
            pk(A, "add", 32, ('p', 32), ('p', 40))
            A(f"v_lshlrev_b32 v24, 3, v0")
            A(f"v_add_u32 v24, {LCS + 512*(ell-2)}, v24")
            if ell == 3: A(f"s_mov_b32 exec_hi, 0xffff")
            A(f"ds_write_b64 v24, v[32:33]")
            if ell == 3: A("s_mov_b64 exec, -1")
    TL = opt.get("tl", 4)
    stamp(A, 1)
    issue(0); issue(1)
    stamp(A, 2)
    A(f"s_waitcnt vmcnt({npc})")
    stamp(A, 3)
    A("s_barrier")
    issue(2)
    A(f"v_mov_b32 v24, {LNON}")
    A("ds_read_b64 v[26:27], v24")
    A("s_waitcnt lgkmcnt(0)")
    A(f"v_readfirstlane_b32 s{S_TAG}, v26")
    A(f"v_readfirstlane_b32 s{S_TAG+1}, v27")
    A(f"s_mov_b32 s{S_PC}, {POLL_MAX}")
    for n in range(1, 7):
        if n == TL + 1:
            A("s_waitcnt vmcnt(0)" if n + 1 > 6 or True else "")
            table_check(f"{P}_retry")
            A.label(f"{P}_tok")
            table_write()
            A("s_waitcnt lgkmcnt(0)")
        else:
            A(f"s_waitcnt vmcnt({npc if n + 1 <= 6 else 0})")
        stamp(A, 3 + n)
        A("s_barrier")
        if n == TL: table_loads()
        if n + 2 <= 6: issue(n + 2)
    A("s_barrier")
    stamp(A, 10)
    A(f"s_branch {P}_done")
    A.label(f"{P}_retry")
    A(f"s_sub_u32 s{S_PC}, s{S_PC}, 1")
    A(f"s_cmp_eq_u32 s{S_PC}, 0")
    A(f"s_cbranch_scc1 {P}_tok")
    table_loads()
    A("s_waitcnt vmcnt(0)")
    table_check(f"{P}_retry")
    A(f"s_branch {P}_tok")
    A.label(f"{P}_done")

VXA0, VXA1, VW0, VW1 = 2, 3, 4, 5
XF, WR, ACC = 8, 32, 96
def qreg(dt, T): return ACC + 4 * (2 * dt + T)
def kreg(dt, tau): return ACC + 16 + 4 * (3 * dt + tau)
def vreg(dt, tau): return ACC + 40 + 4 * (3 * dt + tau)
def zreg(n, T): return ACC + 4 * (2 * n + T)
def b_tiles(par):
    return [('z2' if par == 0 else 'z1', u) for u in range(7)]

def compute_addr(A, typ):
    isA = typ == "A"
    A("v_and_b32 v8, 15, v0")
    A("v_lshrrev_b32 v9, 4, v0")
    A("v_lshrrev_b32 v10, 1, v8")
    A("v_xor_b32 v10, v10, v9")
    A("v_lshlrev_b32 v10, 4, v10")
    A("v_lshl_add_u32 v10, v8, 7, v10")
    A(f"s_lshl_b32 s72, s{S_RG}, 12")
    A(f"v_add_u32 v{VXA0}, s72, v10")
    A(f"v_xor_b32 v{VXA1}, 64, v{VXA0}")
    A("v_lshrrev_b32 v10, 2, v8")
    A("v_lshl_add_u32 v10, v9, 2, v10")
    A("v_and_b32 v11, 3, v8")
    A("v_lshlrev_b32 v11, 3, v11")
    A(f"v_mul_u32_u24 v12, {384 if isA else 448}, v10")
    A(f"v_add_u32 v12, v12, v11")
    A(f"v_add_u32 v12, {LW}, v12")
    if isA:
        A("v_and_b32 v11, 1, v9")
        A("v_lshlrev_b32 v11, 1, v11")
        A("v_lshrrev_b32 v13, 3, v8")
        A("v_add_u32 v11, v11, v13")
        A(f"s_lshr_b32 s72, s{S_W}, 2")
        A(f"s_lshl_b32 s72, s72, 1")
        A(f"v_xor_b32 v11, s72, v11")
        A(f"v_lshl_add_u32 v{VW0}, v11, 5, v12")
        A(f"v_xor_b32 v11, 1, v11")
        A(f"v_lshl_add_u32 v{VW1}, v11, 5, v12")
    else:
        A("v_and_b32 v11, 1, v9")
        A(f"v_lshl_add_u32 v{VW0}, v11, 5, v12")
        A(f"v_xor_b32 v11, 1, v11")
        A(f"v_lshl_add_u32 v{VW1}, v11, 5, v12")

def main_loop(A, typ, par, P, hook0, opt={}):
    isA = typ == "A"
    XS, WS_ = (XSA, WSA) if isA else (XSB, WSB)
    stride = 384 if isA else 448
    NX = 3 if isA else 2
    F = 6 if isA else 7
    fs = 2
    L = LG(A)
    if isA:
        tl = [(sec, dt) for sec in range(3) for dt in range(2)]
        def waddr(f):
            sec, dt = tl[f]; return (VW1 if dt else VW0), sec * 128
    else:
        tl = b_tiles(par)
        def waddr(f):
            kind, u = tl[f]; t = u if kind == 'z2' else 7 + u
            return (VW1 if t & 1 else VW0), (t >> 1) * 64
    def rdX(kk):
        if opt.get("nords"): return
        for tau in range(NX):
            A(f"ds_read_b128 {v(XF + 12*kk + 4*tau, 4)}, v{VXA1 if kk else VXA0} offset:{LX + tau*2048}")
            L.issue(("x", kk))
    def rdW(f, kk):
        if opt.get("nords"): return
        ad, off = waddr(f); r = WR + 4 * f
        for sec in range(2):
            A(f"ds_read_b64_tr_b16 {v(r + 2*sec, 2)}, v{ad} offset:{off + (32*kk + 16*sec) * stride}")
            L.issue(("w", f))
    def mm(f, kk): _mm(A, f, kk)
    def _mm(A, f, kk):
        if opt.get("nomm"): return
        r = WR + 4 * f; xb = XF + 12 * kk
        if isA:
            sec, dt = tl[f]
            if sec == 0:
                for T in range(2): mfma(A, qreg(dt, T), r, xb + 4 * (T + 1), qreg(dt, T))
            elif sec == 1:
                for tau in range(3): mfma(A, kreg(dt, tau), r, xb + 4 * tau, kreg(dt, tau))
            else:
                for tau in range(3): mfma(A, vreg(dt, tau), xb + 4 * tau, r, vreg(dt, tau))
        else:
            kind, u = tl[f]
            for T in range(2):
                if kind == 'z2': mfma(A, zreg(f, T), xb + 4 * T, r, zreg(f, T))
                else: mfma(A, zreg(f, T), r, xb + 4 * T, zreg(f, T))
    def rd_items_x():
        return [] if opt.get("nords") else [('r', f"ds_read_b128 {v(XF + 4*tau, 4)}, v{VXA0} offset:{LX + tau*2048}", ("x", 0)) for tau in range(NX)]
    def rd_items_w(f):
        if opt.get("nords"): return []
        ad, off = waddr(f); r = WR + 4 * f
        return [('r', f"ds_read_b64_tr_b16 {v(r + 2*sec, 2)}, v{ad} offset:{off + 16*sec*stride}", ("w", f)) for sec in range(2)]
    rds = rd_items_x()
    for f in range(fs + 1): rds += rd_items_w(f)
    tailseq = []
    tm = []
    for f in range(fs + 1, F):
        lines = []
        _mm(lambda s_: lines.append(s_), f, 1)
        tm.append((f, lines))
    nm = sum(len(x[1]) for x in tm)
    per = 2
    for f, lines in tm:
        for ln in lines:
            tailseq.append(('m', ln))
            for _ in range(per):
                if rds: tailseq.append(rds.pop(0))
        rds += rd_items_w(f)
    tailseq += rds
    nacc = 64 if isA else 56
    for r in range(nacc): A(f"v_mov_b32 v{ACC + r}, 0")
    A(f"s_mov_b32 s70, {XS}"); A(f"s_mov_b32 s71, {-2*XS}")
    A(f"s_mov_b32 s72, {WS_}"); A(f"s_mov_b32 s73, {-2*WS_}")
    A(f"s_mov_b32 s{S_SL}, 0")
    A(f"s_mov_b32 s{S_LC}, 7")
    stamp(A, 1)
    A("s_waitcnt lgkmcnt(0)")
    dbgst(A, 4, SRD_DBG)
    A("s_barrier")
    dbgst(A, 5, SRD_DBG, neg=True); dbgst(A, 6, SRD_DBG)
    stamp(A, 2)
    for it in tailseq:
        if it[0] == 'r': A(it[1]); L.issue(it[2])
    start = list(L.p)
    A.label(f"{P}_loop")
    rdX(1)
    for f in range(F):
        if f == 0: L.wait(("x", 0))
        L.wait(("w", f))
        mm(f, 0)
        rdW(f, 1)
    for f in range(fs + 1):
        if f == 0: L.wait(("x", 1))
        L.wait(("w", f))
        mm(f, 1)
        if f == 0:
            A(f"s_add_u32 s{S_SL}, s{S_SL}, 1")
            A(f"s_cmp_eq_u32 s{S_SL}, 3")
            A(f"s_cselect_b32 s68, s71, s70")
            A(f"s_cselect_b32 s69, s73, s72")
            A(f"s_cselect_b32 s{S_SL}, 0, s{S_SL}")
        if f == 1:
            A(f"v_add_u32 v{VXA0}, s68, v{VXA0}"); A(f"v_add_u32 v{VXA1}, s68, v{VXA1}")
            A(f"v_add_u32 v{VW0}, s69, v{VW0}"); A(f"v_add_u32 v{VW1}, s69, v{VW1}")
    L.wait_all()
    A("s_barrier")
    A(f"s_cmp_lg_u32 s{S_LC}, 7")
    A(f"s_cbranch_scc1 {P}_nohook")
    hook0()
    A.label(f"{P}_nohook")
    if opt.get("pf", True): touch_issue(A, P)
    for it in tailseq:
        if it[0] == 'm': A(it[1])
        else: A(it[1]); L.issue(it[2])
    A(f"s_sub_u32 s{S_LC}, s{S_LC}, 1")
    A(f"s_cmp_lg_u32 s{S_LC}, 0")
    A(f"s_cbranch_scc1 {P}_loop")
    assert start == L.p, (start, L.p)
    L.wait_all()
    dbgst(A, 7 if isA else 9, SRD_DBG, neg=True); dbgst(A, 8 if isA else 10, SRD_DBG)
    stamp(A, 3)

def epilogue_A(A, P, opt):
    stf = opt.get("stflags", " sc1")
    aL, bL = 8, 11
    aq, bq = 14, 16
    ZERO, NEG = 18, 19
    aR, bR = 20, 32
    csV = 44
    csQ, csK = 48, 56
    TM = [64 + 2 * i for i in range(8)]
    SB = 80
    t0, t1, t2, t3, t4 = 4, 5, 6, 7, 46
    L = LG(A)
    A(f"v_and_b32 v{t0}, 15, v0")
    A(f"v_lshrrev_b32 v{t1}, 4, v0")
    A(f"s_lshl_b32 s72, s{S_RG}, 7")
    A(f"v_lshlrev_b32 v{t0}, 2, v{t0}")
    A(f"v_lshlrev_b32 v{t1}, 4, v{t1}")
    A(f"s_add_u32 s72, s72, {LA1}")
    A(f"v_add_u32 v{t2}, s72, v{t0}")
    A(f"v_add_u32 v{t3}, s72, v{t1}")
    A(f"s_lshr_b32 s73, s{S_W}, 2")
    A(f"s_lshl_b32 s73, s73, 7")
    A(f"s_add_u32 s73, s73, {LCS}")
    A(f"v_add_u32 v{t0}, s73, v{t0}")
    A(f"v_add_u32 v{t1}, s73, v{t1}")
    for dt in range(2):
        A(f"ds_read_b128 {v(csQ+4*dt,4)}, v{t1} offset:{64*dt}"); L.issue("q")
    for tau in range(3):
        A(f"ds_read_b32 v{aL+tau}, v{t2} offset:{64*tau}"); L.issue("q")
        A(f"ds_read_b32 v{bL+tau}, v{t2} offset:{64*tau+LB1-LA1}"); L.issue("q")
    for dt in range(2):
        A(f"ds_read_b128 {v(csK+4*dt,4)}, v{t1} offset:{256+64*dt}"); L.issue("k")
    for dt in range(2):
        A(f"ds_read_b32 v{csV+dt}, v{t0} offset:{512+64*dt}"); L.issue("v")
    L.wait("q")
    for tau in range(3):
        A(f"ds_read_b128 {v(aR+4*tau,4)}, v{t3} offset:{64*tau}"); L.issue("v")
        A(f"ds_read_b128 {v(bR+4*tau,4)}, v{t3} offset:{64*tau+LB1-LA1}"); L.issue("v")
    sc = LOG2E * 28 ** -0.5
    for T in range(2):
        A(f"v_mul_f32 v{aq+T}, {fhex(sc)}, v{aL+T+1}")
        A(f"v_mul_f32 v{bq+T}, {fhex(sc)}, v{bL+T+1}")
    tc = 0
    for dt in range(2):
        for T in range(2):
            for h in range(2):
                z = qreg(dt, T) + 2 * h; t_ = TM[tc % 8]; tc += 1
                pk(A, "mul", t_, ('p', csQ + 4 * dt + 2 * h), ('b', bq + T))
                pk(A, "fma", z, ('p', z), ('b', aq + T), ('p', t_))
    L.wait("k")
    for dt in range(2):
        for tau in range(3):
            for h in range(2):
                z = kreg(dt, tau) + 2 * h; t_ = TM[tc % 8]; tc += 1
                pk(A, "mul", t_, ('p', csK + 4 * dt + 2 * h), ('b', bL + tau))
                pk(A, "fma", z, ('p', z), ('b', aL + tau), ('p', t_))
    smask(A, 74, lane_mask(lambda g, c: g == 3))
    A(f"v_mov_b32 v{ZERO}, 0")
    A(f"v_mov_b32 v{NEG}, {fhex(-3.0e38)}")
    for T in range(2):
        d = qreg(0, T); e = qreg(1, T)
        cvt2(A, d, d, d + 1); cvt2(A, d + 1, d + 2, d + 3); cvt2(A, d + 2, e, e + 1); cvt2(A, d + 3, e + 2, e + 3)
        A(f"v_cndmask_b32 v{d+2}, v{d+2}, v{ZERO}, s[74:75]")
        A(f"v_cndmask_b32 v{d+3}, v{d+3}, v{ZERO}, s[74:75]")
    for tau in range(3):
        d = kreg(0, tau); e = kreg(1, tau)
        cvt2(A, d, d, d + 1); cvt2(A, d + 1, d + 2, d + 3); cvt2(A, d + 2, e, e + 1); cvt2(A, d + 3, e + 2, e + 3)
    for T in range(2):
        mfma(A, SB + 8 * T, kreg(0, T), qreg(0, T), None)
        mfma(A, SB + 8 * T + 4, kreg(0, T + 1), qreg(0, T), None)
    L.wait("v")
    for dt in range(2):
        for tau in range(3):
            for h in range(2):
                z = vreg(dt, tau) + 2 * h; t_ = TM[tc % 8]; tc += 1
                pk(A, "mul", t_, ('p', bR + 4 * tau + 2 * h), ('b', csV + dt))
                pk(A, "fma", z, ('p', z), ('p', aR + 4 * tau + 2 * h), ('p', t_))
    VB = vreg(0, 0)
    for dt in range(2):
        for tau in range(3):
            sb = vreg(dt, tau); d = VB + 12 * dt + 2 * tau
            cvt2(A, d, sb, sb + 1); cvt2(A, d + 1, sb + 2, sb + 3)
    MP, MC = 80, 88
    for r in range(4):
        smask(A, MC + 2 * r, lane_mask(lambda g, c: (c - 4 * g - r) >= 0 and (c - 4 * g - r) % 2 == 0 and (c - 4 * g - r) <= 14))
        smask(A, MP + 2 * r, lane_mask(lambda g, c: (4 * g + r - c) >= 2 and (c - r) % 2 == 0))
    def mask_tile(T):
        for r in range(4):
            A(f"v_cndmask_b32 v{SB+8*T+r}, v{NEG}, v{SB+8*T+r}, s[{MP+2*r}:{MP+2*r+1}]")
            A(f"v_cndmask_b32 v{SB+8*T+4+r}, v{NEG}, v{SB+8*T+4+r}, s[{MC+2*r}:{MC+2*r+1}]")
    mask_tile(1)
    A(f"s_or_b32 s72, s{S_I}, s{S_RG}")
    A(f"s_cmp_eq_u32 s72, 0")
    A(f"s_cselect_b64 s[76:77], 0, -1")
    for r in range(4):
        A(f"s_and_b64 s[{MP+2*r}:{MP+2*r+1}], s[{MP+2*r}:{MP+2*r+1}], s[76:77]")
    mask_tile(0)
    MX = [64, 65]; TX = [66, 67]
    for T in range(2):
        b = SB + 8 * T
        A(f"v_max3_f32 v{MX[T]}, v{b}, v{b+1}, v{b+2}")
        A(f"v_max3_f32 v{TX[T]}, v{b+3}, v{b+4}, v{b+5}")
    for T in range(2):
        b = SB + 8 * T
        A(f"v_max3_f32 v{MX[T]}, v{MX[T]}, v{b+6}, v{b+7}")
    for T in range(2):
        A(f"v_max_f32 v{MX[T]}, v{MX[T]}, v{TX[T]}")
    allreduce_rows(A, "max", MX, TX)
    for T in range(2):
        b = SB + 8 * T
        for h in range(4):
            pk(A, "add", b + 2 * h, ('p', b + 2 * h), ('b', MX[T]), neg=[0, 1])
    for T in range(2):
        b = SB + 8 * T
        for r in range(8): A(f"v_exp_f32 v{b+r}, v{b+r}")
    SM = [68, 70]; T2 = [72, 74]
    for T in range(2):
        b = SB + 8 * T
        pk(A, "add", SM[T], ('p', b), ('p', b + 2))
        pk(A, "add", T2[T], ('p', b + 4), ('p', b + 6))
    for T in range(2): pk(A, "add", SM[T], ('p', SM[T]), ('p', T2[T]))
    for T in range(2): A(f"v_add_f32 v{SM[T]}, v{SM[T]}, v{SM[T]+1}")
    for T in range(2):
        b = SB + 8 * T
        for h in range(4): cvt2(A, b + h, b + 2 * h, b + 2 * h + 1)
    OR_ = {(0, 0): qreg(1, 0), (0, 1): qreg(1, 1), (1, 0): kreg(1, 0), (1, 1): kreg(1, 1)}
    for T in range(2):
        for dt in range(2):
            mfma(A, OR_[(dt, T)], VB + 12 * dt + 2 * T, SB + 8 * T, None)
    allreduce_rows(A, "add", SM, TX)
    for T in range(2): A(f"v_rcp_f32 v{SM[T]}, v{SM[T]}")
    for T in range(2):
        for dt in range(2):
            o = OR_[(dt, T)]
            for h in range(2): pk(A, "mul", o + 2 * h, ('p', o + 2 * h), ('b', SM[T]))
    OF = [48, 52]
    for T in range(2):
        o0, o1 = OR_[(0, T)], OR_[(1, T)]
        cvt2(A, OF[T], o0, o0 + 1); cvt2(A, OF[T] + 1, o0 + 2, o0 + 3)
        cvt2(A, OF[T] + 2, o1, o1 + 1); cvt2(A, OF[T] + 3, o1 + 2, o1 + 3)
        A(f"v_cndmask_b32 v{OF[T]+2}, v{OF[T]+2}, v{ZERO}, s[74:75]")
        A(f"v_cndmask_b32 v{OF[T]+3}, v{OF[T]+3}, v{ZERO}, s[74:75]")
    A(f"s_lshl_b32 s72, s{S_I}, 3")
    A(f"s_lshl_b32 s73, s{S_RG}, 1")
    A(f"s_add_u32 s72, s72, s73")
    A(f"s_lshl_b32 s72, s72, 4")
    A(f"s_add_u32 s72, s72, s{S_J}")
    A(f"s_lshl_b32 s72, s72, 10")
    A(f"s_add_u32 s72, s72, {WS_O}")
    A(f"s_add_u32 s73, s72, 16384")
    A(f"v_lshlrev_b32 v{t0}, 4, v0")
    for T in range(2):
        if not opt.get("nost"): A(f"buffer_store_dwordx4 {v(OF[T],4)}, v{t0}, {s(SRD_WS,4)}, s{72 + T} offen{stf}")
    A(f"s_lshl_b32 s72, s{S_I}, 2")
    A(f"s_add_u32 s72, s72, s{S_RG}")
    A(f"s_lshl_b32 s72, s72, 4")
    A(f"s_add_u32 s72, s72, s{S_J}")
    A(f"s_lshl_b32 s72, s72, 3")
    A(f"s_add_u32 s{S_FLG}, s72, {WS_FO2}")

def gelu_pairs(A, pairs, tmp, c0, S_C1, S_ONE):
    g = len(tmp)
    for b in range(0, len(pairs), g):
        grp = list(zip(pairs[b:b+g], tmp))
        for y, t in grp: pk(A, "mul", t, ('p', y), ('p', y))
        for y, t in grp: pk(A, "fma", t, ('p', t), ('s', S_C1), ('p', c0))
        for y, t in grp: pk(A, "mul", t, ('p', t), ('p', y))
        for y, t in grp:
            A(f"v_exp_f32 v{t}, v{t}"); A(f"v_exp_f32 v{t+1}, v{t+1}")
        for y, t in grp: pk(A, "add", t, ('p', t), ('s', S_ONE))
        for y, t in grp:
            A(f"v_rcp_f32 v{t}, v{t}"); A(f"v_rcp_f32 v{t+1}, v{t+1}")
        for y, t in grp: pk(A, "mul", y, ('p', y), ('p', t))

def gelu_consts(A, C0, S_C1, S_ONE):
    c0 = -2 * LOG2E * 0.7978845608028654; c1 = c0 * 0.044715
    A(f"s_mov_b32 s{S_C1}, {fhex(c1)}"); A(f"s_mov_b32 s{S_C1+1}, {fhex(c1)}")
    A(f"s_mov_b32 s{S_ONE}, 1.0"); A(f"s_mov_b32 s{S_ONE+1}, 1.0")
    A(f"v_mov_b32 v{C0}, {fhex(c0)}"); A(f"v_mov_b32 v{C0+1}, {fhex(c0)}")

def epilogue_Z2(A, P, opt):
    stf = opt.get("stflags", " sc1")
    S_C1, S_ONE = 62, 78
    aR, bR, csL, C0 = 20, 28, 36, 44
    TM = [48 + 2 * i for i in range(8)]
    SV, SV2 = 64, 72
    VL16 = 14
    t0, t1, t3 = 4, 5, 7
    gelu_consts(A, C0, S_C1, S_ONE)
    A(f"v_and_b32 v{t0}, 15, v0")
    A(f"v_lshrrev_b32 v{t1}, 4, v0")
    A(f"s_lshl_b32 s72, s{S_RG}, 7")
    A(f"s_add_u32 s72, s72, {LA1 + 64}")
    A(f"v_lshlrev_b32 v{t0}, 2, v{t0}")
    A(f"v_lshlrev_b32 v{t1}, 4, v{t1}")
    A(f"v_add_u32 v{t3}, s72, v{t1}")
    A(f"v_add_u32 v{t0}, {LCS}, v{t0}")
    A(f"v_lshlrev_b32 v{VL16}, 4, v0")
    L = LG(A)
    for T in range(2):
        A(f"ds_read_b128 {v(aR+4*T,4)}, v{t3} offset:{64*T}"); L.issue("a")
        A(f"ds_read_b128 {v(bR+4*T,4)}, v{t3} offset:{64*T+LB1-LA1}"); L.issue("a")
    for u in range(7):
        A(f"ds_read_b32 v{csL+u}, v{t0} offset:{64*u}"); L.issue("a")
    L.wait_all()
    pairs = []; tcyc = 0
    for u in range(7):
        for T in range(2):
            for h in range(2):
                z = zreg(u, T) + 2 * h
                t = TM[tcyc % 8]; tcyc += 1
                pk(A, "mul", t, ('p', bR + 4 * T + 2 * h), ('b', csL + u))
                pk(A, "fma", z, ('p', z), ('p', aR + 4 * T + 2 * h), ('p', t))
                pairs.append(z)
    gelu_pairs(A, pairs, TM[:7], C0, S_C1, S_ONE)
    for T in range(2):
        for h in range(2):
            d1 = SV + 4 * T + 2 * h; d2 = SV2 + 4 * T + 2 * h
            for u in range(7):
                z = zreg(u, T) + 2 * h
                if u == 0:
                    pk(A, "mul", d2, ('p', z), ('p', z))
                elif u == 1:
                    pk(A, "add", d1, ('p', zreg(0, T) + 2 * h), ('p', z))
                    pk(A, "fma", d2, ('p', z), ('p', z), ('p', d2))
                else:
                    pk(A, "add", d1, ('p', d1), ('p', z))
                    pk(A, "fma", d2, ('p', z), ('p', z), ('p', d2))
    W1 = 48
    for n in range(8):
        A(f"v_add_f32_dpp v{W1+n}, v{SV+n}, v{SV+n} row_mirror row_mask:0xf bank_mask:0x3")
    for n in range(8):
        A(f"v_add_f32_dpp v{W1+n}, v{SV2+n}, v{SV2+n} row_mirror row_mask:0xf bank_mask:0xc")
    W2 = 56
    for n in range(4):
        A(f"v_add_f32_dpp v{W2+n}, v{W1+n}, v{W1+n} row_half_mirror row_mask:0xf bank_mask:0x5")
    for n in range(4):
        A(f"v_add_f32_dpp v{W2+n}, v{W1+n+4}, v{W1+n+4} row_half_mirror row_mask:0xf bank_mask:0xa")
    smask(A, 74, lane_mask(lambda g, c: c & 2))
    smask(A, 76, lane_mask(lambda g, c: c & 1))
    W3 = 60
    for n in range(2):
        A(f"v_cndmask_b32 v{W3+n}, v{W2+n}, v{W2+n+2}, s[74:75]")
        A(f"v_cndmask_b32 v{W3+2+n}, v{W2+n+2}, v{W2+n}, s[74:75]")
    for n in range(2):
        A(f"v_add_f32_dpp v{W3+n}, v{W3+2+n}, v{W3+n} quad_perm:[2,3,0,1] row_mask:0xf bank_mask:0xf")
    G = SV
    A(f"v_cndmask_b32 v{G}, v{W3}, v{W3+1}, s[76:77]")
    A(f"v_cndmask_b32 v{G+1}, v{W3+1}, v{W3}, s[76:77]")
    A(f"v_add_f32_dpp v{G}, v{G+1}, v{G} quad_perm:[1,0,3,2] row_mask:0xf bank_mask:0xf")
    A(f"v_mov_b32_dpp v{G+1}, v{G} row_ror:8 row_mask:0xf bank_mask:0xf")
    A(f"v_mov_b32 v{G+2}, s{S_TAG}")
    A(f"v_mov_b32 v{G+3}, s{S_TAG+1}")
    A(f"v_bfe_u32 v{G+4}, v0, 2, 1")
    A(f"v_lshlrev_b32 v{G+4}, 4, v{G+4}")
    A(f"v_lshrrev_b32 v{G+5}, 4, v0")
    A(f"v_lshl_add_u32 v{G+4}, v{G+5}, 2, v{G+4}")
    A(f"v_and_b32 v{G+5}, 3, v0")
    A(f"v_add_u32 v{G+4}, v{G+4}, v{G+5}")
    A(f"v_lshlrev_b32 v{G+4}, 4, v{G+4}")
    A(f"s_lshl_b32 s72, s{S_I}, 2")
    A(f"s_add_u32 s72, s72, s{S_RG}")
    A(f"s_lshl_b32 s73, s72, 12")
    A(f"s_add_u32 s73, s73, {WS_ST2}")
    A(f"s_lshl_b32 s72, s{S_G}, 9")
    A(f"s_add_u32 s72, s72, s73")
    smask(A, 74, lane_mask(lambda g, c: c < 8))
    A("s_mov_b64 exec, s[74:75]")
    A(f"buffer_store_dwordx4 {v(G,4)}, v{G+4}, {s(SRD_WS,4)}, s72 offen sc1")
    A("s_mov_b64 exec, -1")
    stamp(A, 4)
    PR = [80, 84, 88, 92]
    A(f"s_mov_b32 s{S_PC}, {POLL_MAX}")
    A.label(f"{P}_again")
    for q in range(4):
        A(f"buffer_load_dwordx4 {v(PR[q],4)}, v{VL16}, {s(SRD_WS,4)}, s73 offen offset:{1024*q} sc1")
    A("s_waitcnt vmcnt(0)")
    for q in range(4):
        A(f"v_cmp_eq_u32 vcc, s{S_TAG}, v{PR[q]+2}")
        A(f"v_cmp_eq_u32 s[76:77], s{S_TAG+1}, v{PR[q]+3}")
        A(f"s_and_b64 vcc, vcc, s[76:77]")
        if q == 0: A("s_mov_b64 s[80:81], vcc")
        else: A("s_and_b64 s[80:81], s[80:81], vcc")
    A("s_cmp_eq_u64 s[80:81], -1")
    A(f"s_cbranch_scc1 {P}_ok")
    A(f"s_sub_u32 s{S_PC}, s{S_PC}, 1")
    A(f"s_cmp_lg_u32 s{S_PC}, 0")
    A(f"s_cbranch_scc1 {P}_again")
    A.label(f"{P}_ok")
    dbgst(A, 14, SRD_DBG)
    stamp(A, 6)
    a_, b_ = PR[0], PR[1]
    pk(A, "add", PR[0], ('p', PR[0]), ('p', PR[1]))
    pk(A, "add", PR[2], ('p', PR[2]), ('p', PR[3]))
    pk(A, "add", 52, ('p', PR[0]), ('p', PR[2]))
    A("v_mov_b32 v54, v52"); A("v_mov_b32 v55, v53")
    A("v_permlane32_swap_b32 v52, v54"); A("v_permlane32_swap_b32 v53, v55")
    pk(A, "add", 52, ('p', 52), ('p', 54))
    A(f"v_mul_f32 v52, {fhex(1/896)}, v52")
    A(f"v_mul_f32 v53, {fhex(1/896)}, v53")
    A("v_fma_f32 v53, -v52, v52, v53")
    A("v_max_f32 v53, 0, v53")
    A(f"v_add_f32 v53, {fhex(1e-5)}, v53")
    A("v_rsq_f32 v53, v53")
    A("v_mul_f32 v52, v52, v53")
    A("v_sub_f32 v52, 0, v52")
    A("v_and_b32 v54, 31, v0")
    A("v_lshlrev_b32 v54, 2, v54")
    A(f"s_lshl_b32 s72, s{S_W}, 8")
    A(f"s_add_u32 s72, s72, {LSC}")
    A("v_add_u32 v54, s72, v54")
    A("ds_write_b32 v54, v53")
    A("ds_write_b32 v54, v52 offset:128")
    A("v_lshrrev_b32 v55, 4, v0")
    A("v_lshlrev_b32 v55, 4, v55")
    A("v_add_u32 v55, s72, v55")
    A("s_waitcnt lgkmcnt(0)")
    for T in range(2):
        A(f"ds_read_b128 {v(aR+4*T,4)}, v55 offset:{64*T}")
        A(f"ds_read_b128 {v(bR+4*T,4)}, v55 offset:{128+64*T}")
    A(f"s_lshl_b32 s72, s{S_I}, 2")
    A(f"s_add_u32 s72, s72, s{S_RG}")
    A(f"s_mul_i32 s72, s72, {56*1024}")
    A(f"s_mul_i32 s74, s{S_G}, {7*1024}")
    A(f"s_add_u32 s72, s72, s74")
    A(f"s_add_u32 s72, s72, {WS_Z2N}")
    A(f"s_add_u32 s73, s72, 4096")
    A("s_waitcnt lgkmcnt(0)")
    for u in range(7):
        for T in range(2):
            for h in range(2):
                z = zreg(u, T) + 2 * h
                pk(A, "fma", z, ('p', z), ('p', aR + 4 * T + 2 * h), ('p', bR + 4 * T + 2 * h))
        z = zreg(u, 0)
        cvt2(A, z, z, z + 1); cvt2(A, z + 1, z + 2, z + 3); cvt2(A, z + 2, z + 4, z + 5); cvt2(A, z + 3, z + 6, z + 7)
        if not opt.get("nost"): A(f"buffer_store_dwordx4 {v(z,4)}, v{VL16}, {s(SRD_WS,4)}, s{72 + (u >> 2)} offen offset:{1024*(u&3)}{stf}")
    A(f"s_lshl_b32 s72, s{S_I}, 2")
    A(f"s_add_u32 s72, s72, s{S_RG}")
    A(f"s_lshl_b32 s72, s72, 3")
    A(f"s_lshl_b32 s73, s{S_G}, 9")
    A(f"s_add_u32 s72, s72, s73")
    A(f"s_add_u32 s{S_FLG}, s72, {WS_FZ2}")

def epilogue_Z1(A, P, opt):
    stf = opt.get("stflags", " sc1")
    S_C1, S_ONE = 62, 78
    aL, bL, csZ1, C0 = 8, 10, 12, 44
    TM = [48 + 2 * i for i in range(8)]
    VL8 = 46
    t0, t1, t2 = 4, 5, 6
    gelu_consts(A, C0, S_C1, S_ONE)
    A(f"v_and_b32 v{t0}, 15, v0")
    A(f"v_lshrrev_b32 v{t1}, 4, v0")
    A(f"s_lshl_b32 s72, s{S_RG}, 7")
    A(f"s_add_u32 s72, s72, {LA1 + 64}")
    A(f"v_lshlrev_b32 v{t0}, 2, v{t0}")
    A(f"v_lshlrev_b32 v{t1}, 4, v{t1}")
    A(f"v_add_u32 v{t2}, s72, v{t0}")
    A(f"v_add_u32 v{t1}, {LCS + 7*64}, v{t1}")
    A(f"v_lshlrev_b32 v{VL8}, 3, v0")
    L = LG(A)
    for T in range(2):
        A(f"ds_read_b32 v{aL+T}, v{t2} offset:{64*T}"); L.issue("a")
        A(f"ds_read_b32 v{bL+T}, v{t2} offset:{64*T+LB1-LA1}"); L.issue("a")
    for u in range(7):
        A(f"ds_read_b128 {v(csZ1+4*u,4)}, v{t1} offset:{64*u}"); L.issue("a")
    A(f"s_lshl_b32 s74, s{S_I}, 3")
    A(f"s_lshl_b32 s75, s{S_RG}, 1")
    A(f"s_add_u32 s74, s74, s75")
    A(f"s_lshl_b32 s74, s74, 3")
    A(f"s_add_u32 s74, s74, s{S_G}")
    A(f"s_mul_i32 s74, s74, 3584")
    A(f"s_add_u32 s74, s74, {WS_Z1}")
    A(f"s_add_u32 s75, s74, {8*3584}")
    A(f"v_lshlrev_b32 v{VL8+1}, 4, v0")
    L.wait_all()
    tcyc = 0
    for T in range(2):
        pairs = []
        for u in range(7):
            for h in range(2):
                z = zreg(u, T) + 2 * h
                t = TM[tcyc % 8]; tcyc += 1
                pk(A, "mul", t, ('p', csZ1 + 4 * u + 2 * h), ('b', bL + T))
                pk(A, "fma", z, ('p', z), ('b', aL + T), ('p', t))
                pairs.append(z)
        gelu_pairs(A, pairs, TM[:7], C0, S_C1, S_ONE)
        for p in range(3):
            z = zreg(2 * p, T); y = zreg(2 * p + 1, T)
            cvt2(A, z, z, z + 1); cvt2(A, z + 1, z + 2, z + 3); cvt2(A, z + 2, y, y + 1); cvt2(A, z + 3, y + 2, y + 3)
            if not opt.get("nost"): A(f"buffer_store_dwordx4 {v(z,4)}, v{VL8+1}, {s(SRD_WS,4)}, s{74 + T} offen offset:{p*1024}{stf}")
        z = zreg(6, T)
        cvt2(A, z, z, z + 1); cvt2(A, z + 1, z + 2, z + 3)
        if not opt.get("nost"): A(f"buffer_store_dwordx2 {v(z,2)}, v{VL8}, {s(SRD_WS,4)}, s{74 + T} offen offset:3072{stf}")
    A(f"s_lshl_b32 s72, s{S_I}, 2")
    A(f"s_add_u32 s72, s72, s{S_RG}")
    A(f"s_lshl_b32 s72, s72, 3")
    A(f"s_add_u32 s72, s72, s{S_G}")
    A(f"s_lshl_b32 s72, s72, 3")
    A(f"s_add_u32 s{S_FLG}, s72, {WS_FZ1}")
    stamp(A, 5)

S_TK, S_TO = 92, 93
def touch_setup(A, P):
    VT = 161
    A(f"s_lshr_b32 s64, s2, 3")
    A(f"s_lshr_b32 s65, s{S_W}, 1")
    A(f"s_sub_u32 s{S_TK}, 6, s65")
    A(f"s_mov_b32 s{S_TO+1}, {hex(BIG)}")
    A(f"s_cmp_ge_u32 s{S_W}, 4")
    A(f"s_cbranch_scc1 {P}_t4")
    srd(A, 40, P_WSP, 2048 * 4096)
    A(f"s_and_b32 s65, s2, 3")
    A(f"s_lshl_b32 s65, s65, 9")
    A(f"s_lshl_b32 s66, s64, 4")
    A(f"s_add_u32 s65, s65, s66")
    A(f"s_lshl_b32 s66, s{S_W}, 2")
    A(f"s_add_u32 s65, s65, s66")
    A(f"s_lshl_b32 s65, s65, 12")
    A(f"s_lshl_b32 s66, s{S_KH}, 11")
    A(f"s_add_u32 s{S_TO}, s65, s66")
    A(f"v_lshrrev_b32 v{VT}, 4, v0")
    A(f"v_lshlrev_b32 v{VT}, 12, v{VT}")
    A(f"v_and_b32 v{VT-1}, 15, v0")
    A(f"v_lshl_add_u32 v{VT}, v{VT-1}, 7, v{VT}")
    A(f"s_branch {P}_te")
    A.label(f"{P}_t4")
    A(f"v_lshlrev_b32 v{VT}, 7, v0")
    A(f"s_cmp_ge_u32 s{S_W}, 6")
    A(f"s_cbranch_scc1 {P}_t6")
    srd(A, 40, P_WO, 448 * 896)
    A(f"s_lshl_b32 s65, s64, 14")
    A(f"s_and_b32 s66, s{S_W}, 1")
    A(f"s_lshl_b32 s66, s66, 13")
    A(f"s_add_u32 s{S_TO}, s65, s66")
    A(f"s_branch {P}_te")
    A.label(f"{P}_t6")
    srd(A, 40, P_WOUT, 896 * 896)
    A(f"s_lshl_b32 s65, s64, 15")
    A(f"s_and_b32 s66, s{S_W}, 1")
    A(f"s_lshl_b32 s66, s66, 14")
    A(f"s_add_u32 s{S_TO}, s65, s66")
    A(f"s_add_u32 s{S_TO+1}, s{S_TO}, {64*128}")
    A.label(f"{P}_te")

def touch_issue(A, P):
    A(f"s_cmp_lg_u32 s{S_LC}, s{S_TK}")
    A(f"s_cbranch_scc1 {P}_notouch")
    A(f"buffer_load_dword v160, v161, s[40:43], s{S_TO} offen")
    A(f"s_cmp_lt_u32 s{S_W}, 6")
    A(f"s_cbranch_scc1 {P}_notouch")
    A(f"buffer_load_dword v160, v161, s[40:43], s{S_TO+1} offen")
    A.label(f"{P}_notouch")

def compute_p1(A, typ, par, opt):
    P = f"p1{typ}c{par}"
    isA = typ == "A"
    A("s_waitcnt lgkmcnt(0)")
    srd(A, SRD_X, P_X, 2048 * 896)
    if isA: srd(A, SRD_W, P_WQKV, 448 * 2688)
    else: srd(A, SRD_W, P_WIN, 448 * 3584)
    srd(A, SRD_WS, P_WS, WS_BYTES)
    srd(A, SRD_DBG, P_DBG, 256)
    dbgst(A, 2, SRD_DBG, neg=True); dbgst(A, 3, SRD_DBG)
    A(f"s_and_b32 s{S_RG}, s{S_W}, 3")
    A(f"s_lshr_b32 s{S_J}, s{S_W}, 2")
    A(f"s_lshl_b32 s64, s{S_G}, 1")
    A(f"s_add_u32 s{S_J}, s{S_J}, s64")
    A("v_mov_b32 v7, 0")
    A(f"s_or_b32 s72, s2, s{S_W}")
    A("s_cmp_lg_u32 s72, 0")
    A(f"s_cbranch_scc1 {P}_non")
    A("s_memrealtime s[74:75]")
    A("s_waitcnt lgkmcnt(0)")
    A("s_or_b32 s74, s74, 1")
    A("v_mov_b32 v8, s74"); A("v_mov_b32 v9, s75")
    A("s_mov_b64 exec, 1")
    A(f"buffer_store_dwordx2 v[8:9], v7, {s(SRD_DBG,4)}, 0 offen sc1")
    A("s_mov_b64 exec, -1")
    A.label(f"{P}_non")
    lo = isA or par == 0
    hi = isA or par == 1
    def split(flo, fhi, tagn):
        if isA:
            A(f"s_cmp_ge_u32 s{S_W}, 4")
            A(f"s_cbranch_scc1 {P}_{tagn}h")
            flo()
            A(f"s_branch {P}_{tagn}e")
            A.label(f"{P}_{tagn}h")
            fhi()
            A.label(f"{P}_{tagn}e")
        elif par == 0: flo()
        else: fhi()
    split(lambda: cols_load(A, typ, f"{P}_cl"), lambda: rows_load(A), "ld")
    if lo:
        A(f"s_cmp_lg_u32 s{S_W}, 0")
        A(f"s_cbranch_scc1 {P}_nopoll")
        A(f"s_mov_b32 s{S_PC}, {POLL_MAX}")
        A.label(f"{P}_poll")
        A(f"buffer_load_dwordx2 v[8:9], v7, {s(SRD_DBG,4)}, 0 offen sc1")
        A("s_waitcnt vmcnt(0)")
        A("v_readfirstlane_b32 s74, v8")
        A(f"s_sub_u32 s{S_PC}, s{S_PC}, 1")
        A(f"s_cmp_eq_u32 s{S_PC}, 0")
        A(f"s_cbranch_scc1 {P}_pollx")
        A("s_cmp_eq_u32 s74, 0")
        A(f"s_cbranch_scc1 {P}_poll")
        A.label(f"{P}_pollx")
        A(f"v_mov_b32 v10, {LNON}")
        A("ds_write_b64 v10, v[8:9]")
        A.label(f"{P}_nopoll")
    A("s_waitcnt vmcnt(0)")
    split(lambda: cols_compute(A, typ, f"{P}_cc"), lambda: rows_compute(A), "cp")
    if opt.get("pf", True): touch_setup(A, P)
    compute_addr(A, typ)
    def hook():
        A(f"v_mov_b32 v6, {LNON}")
        A("ds_read_b64 v[6:7], v6")
        A("s_waitcnt lgkmcnt(0)")
        A(f"v_readfirstlane_b32 s{S_TAG}, v6")
        A(f"v_readfirstlane_b32 s{S_TAG+1}, v7")
        split(lambda: cols_publish(A, typ, f"{P}_cq"), lambda: rows_publish(A), "pb")
    main_loop(A, typ, par, P, hook, opt)
    A("s_waitcnt vmcnt(0)")
    if isA: epilogue_A(A, P, opt)
    elif par == 0: epilogue_Z2(A, P, opt)
    else: epilogue_Z1(A, P, opt)
    if DBGST["on"]:
        A("s_waitcnt vmcnt(0)")
        dbgst(A, 11 if isA else (12 if par == 0 else 13), SRD_DBG)
    stamp(A, 7)

def stamp_flush12(A, kidx=0):
    if not STAMP["on"]: return
    A("s_waitcnt vmcnt(0)")
    stamp(A, 61)
    A("s_memrealtime s[98:99]")
    A("s_waitcnt lgkmcnt(0)")
    A("v_writelane_b32 v166, s98, 62")
    if STAMP.get("out"):
        srd(A, 40, P_OUT, 2048 * 896)
        A(f"s_mul_i32 s96, s2, 12")
        A(f"s_add_u32 s96, s96, s{S_W}")
        A(f"s_lshl_b32 s96, s96, 9")
        A("v_lshlrev_b32 v167, 3, v0")
        for c in range(3):
            A(f"v_bfe_u32 v165, v166, {11*c}, 11")
            A(f"buffer_store_short v165, v167, s[40:43], s96 offen offset:{2*c}")
            A("s_waitcnt vmcnt(0)")
        return
    A(f"s_lshl_b32 s96, s2, 4")
    A(f"s_add_u32 s96, s96, s{S_W}")
    A(f"s_lshl_b32 s96, s96, 8")
    A(f"s_add_u32 s96, s96, {WS_DBG + kidx*0x100000}")
    A("v_lshlrev_b32 v167, 2, v0")
    A(f"buffer_store_dword v166, v167, {s(SRD_WS,4)}, s96 offen")

def gen_k1(opt, kidx=0):
    A = Asm()
    prologue(A, "k1_end")
    stamp_init(A)
    wg_map(A)
    A(f"s_cmp_ge_u32 s{S_W}, 8")
    A("s_cbranch_scc1 k1_load")
    A(f"s_cmp_ge_u32 s{S_C}, 8")
    A("s_cbranch_scc1 k1_cB")
    compute_p1(A, "A", 0, opt)
    stamp_flush12(A, kidx)
    A("s_endpgm")
    A.label("k1_cB")
    A(f"s_cmp_ge_u32 s{S_W}, 4")
    A("s_cbranch_scc1 k1_cB1")
    compute_p1(A, "B", 0, opt)
    stamp_flush12(A, kidx)
    A("s_endpgm")
    A.label("k1_cB1")
    compute_p1(A, "B", 1, opt)
    stamp_flush12(A, kidx)
    A("s_endpgm")
    A.label("k1_load")
    for typ in "AB":
        if typ == "A":
            A(f"s_cmp_ge_u32 s{S_C}, 8")
            A("s_cbranch_scc1 k1_lB")
        else:
            A.label("k1_lB")
        for ell in range(4):
            if ell < 3:
                A(f"s_cmp_lg_u32 s{S_W}, {8+ell}")
                A(f"s_cbranch_scc1 k1_l{typ}{ell+1}")
            loader_p1(A, typ, ell, opt)
            stamp_flush12(A, kidx)
            A("s_endpgm")
            if ell < 3: A.label(f"k1_l{typ}{ell+1}")
    A.label("k1_end")
    A("s_endpgm")
    return ("k1_kernel", A.text(), 256, 768, F_LDS, 168)
```

```python
from g_f import *
import g_f

NST = 16
S_KK = 62
VZ, VW0, VW1, VL16, VL8 = 2, 3, 4, 5, 6
WF, ZR, ACC2, OACC = 8, 24, 76, 132
def acc2(u, T): return ACC2 + 4 * (2 * u + T)
def oacc(dt, T): return OACC + 4 * (2 * dt + T)
VA = [140 - 88 + 0, 53, 54, 55]

def flag_store(A, sreg, vt):
    A(f"v_mov_b32 v{vt}, s{S_TAG}")
    A(f"v_mov_b32 v{vt+1}, s{S_TAG+1}")
    A(f"v_mov_b32 v{vt+2}, 0")
    A("s_mov_b64 exec, 1")
    A(f"buffer_store_dwordx2 {v(vt,2)}, v{vt+2}, {s(SRD_WS,4)}, s{sreg} offen sc1")
    A("s_mov_b64 exec, -1")

def poll_all(A, P, vaddr, sbase, nl, vt):
    m = (1 << nl) - 1
    A(f"s_mov_b32 s{S_PC}, {POLL_MAX}")
    A.label(f"{P}_pl")
    A(f"buffer_load_dwordx2 {v(vt,2)}, v{vaddr}, {s(SRD_WS,4)}, s{sbase} offen sc1")
    A("s_waitcnt vmcnt(0)")
    A(f"v_cmp_eq_u32 vcc, s{S_TAG}, v{vt}")
    A(f"v_cmp_eq_u32 s[90:91], s{S_TAG+1}, v{vt+1}")
    A("s_and_b64 vcc, vcc, s[90:91]")
    if nl < 64:
        lo = ~m & 0xffffffff; hi = (~m >> 32) & 0xffffffff
        A(f"s_or_b32 vcc_lo, vcc_lo, {hex(lo)}")
        A(f"s_or_b32 vcc_hi, vcc_hi, {hex(hi)}")
    A("s_cmp_eq_u64 vcc, -1")
    A(f"s_cbranch_scc1 {P}_pok")
    A(f"s_sub_u32 s{S_PC}, s{S_PC}, 1")
    A(f"s_cmp_lg_u32 s{S_PC}, 0")
    A(f"s_cbranch_scc1 {P}_pl")
    A.label(f"{P}_pok")

def afrag_addr(A, regs, base_s, t=(56, 57, 58, 59)):
    a, b, c, d = t
    A(f"v_and_b32 v{a}, 15, v0")
    A(f"v_lshrrev_b32 v{b}, 4, v0")
    A(f"v_lshrrev_b32 v{c}, 2, v{a}")
    A(f"v_lshl_add_u32 v{c}, v{b}, 2, v{c}")
    A(f"v_lshlrev_b32 v{c}, 7, v{c}")
    A(f"v_and_b32 v{d}, 3, v{a}")
    A(f"v_lshl_add_u32 v{c}, v{d}, 3, v{c}")
    A(f"v_add_u32 v{c}, s{base_s}, v{c}")
    A(f"v_and_b32 v{b}, 1, v{b}")
    A(f"v_lshlrev_b32 v{b}, 1, v{b}")
    A(f"v_lshrrev_b32 v{d}, 3, v{a}")
    A(f"v_add_u32 v{b}, v{b}, v{d}")
    for dt in range(4):
        A(f"v_xor_b32 v{d}, {dt}, v{b}")
        A(f"v_lshl_add_u32 v{regs[dt]}, v{d}, 5, v{c}")

def compute_gap(A, opt):
    P = "cg"
    A("s_waitcnt vmcnt(0)")
    flag_store(A, S_FLG, 56)
    stamp(A, 8)
    A(f"v_lshlrev_b32 v{VL16}, 4, v0")
    A(f"v_lshlrev_b32 v{VL8}, 3, v0")
    srd(A, SRD_BSP, P_BSP, 4096)
    A(f"s_lshr_b32 s{S_KK}, s{S_W}, 2")
    A(f"s_and_b32 s63, s{S_W}, 3")
    A(f"s_lshl_b32 s64, s{S_TB}, 3")
    A(f"s_lshl_b32 s65, s63, 1")
    A(f"s_add_u32 s64, s64, s65")
    A(f"s_add_u32 s64, s64, s{S_KK}")
    A("v_and_b32 v7, 15, v0")
    A("v_lshlrev_b32 v7, 1, v7")
    A(f"s_lshl_b32 s65, s64, 5")
    A(f"buffer_load_ushort v7, v7, {s(SRD_BSP,4)}, s65 offen")
    OB, AF = 8, 76
    VAo = [52, 53, 54, 55]
    A(f"s_cmp_ge_u32 s{S_DB}, 7")
    A(f"s_cbranch_scc1 {P}_noo1")
    A(f"s_and_b32 s66, s{S_W}, 1")
    A(f"s_lshr_b32 s67, s{S_W}, 1")
    A(f"s_lshl_b32 s68, s{S_TB3}, 1")
    A(f"s_add_u32 s68, s68, s66")
    A(f"s_lshl_b32 s69, s68, 4")
    A(f"s_lshl_b32 s70, s67, 2")
    A(f"s_add_u32 s69, s69, s70")
    A(f"s_lshl_b32 s69, s69, 3")
    A(f"s_add_u32 s69, s69, {WS_FO2}")
    A("v_and_b32 v56, 3, v0")
    A("v_lshlrev_b32 v56, 3, v56")
    poll_all(A, P + "o", 56, 69, 4, 58)
    A(f"s_lshl_b32 s69, s68, 5")
    A(f"s_add_u32 s69, s69, s70")
    A(f"s_lshl_b32 s69, s69, 10")
    A(f"s_add_u32 s69, s69, {WS_O}")
    A(f"s_add_u32 s71, s69, 16384")
    for hh in range(4):
        for T in range(2):
            A(f"buffer_load_dwordx4 {v(OB + 4*(2*hh+T),4)}, v{VL16}, {s(SRD_WS,4)}, s{69 if T == 0 else 71} offen offset:{1024*hh} sc1")
    A(f"s_mul_i32 s72, s67, {112*128}")
    A(f"s_add_u32 s72, s72, {WOIMG}")
    afrag_addr(A, VAo, 72)
    for r in range(32): A(f"v_mov_b32 v{OACC + r}, 0")
    A.label(f"{P}_noo1")
    stamp(A, 9)
    A("s_barrier")
    stamp(A, 10)
    A(f"s_cmp_ge_u32 s{S_DB}, 7")
    A(f"s_cbranch_scc1 {P}_noo2")
    L = LG(A)
    def rd_a(hh):
        for dt in range(4):
            for b in range(2):
                r = AF + 16 * (hh & 1) + 4 * dt + 2 * b
                vr = VAo[dt ^ (2 * (hh & 1))]
                A(f"ds_read_b64_tr_b16 {v(r,2)}, v{vr} offset:{hh*28*128 + 2048*b}")
                L.issue(("a", hh))
    rd_a(0); rd_a(1)
    for hh in range(4):
        A(f"s_waitcnt vmcnt({2*(3-hh)})")
        L.wait(("a", hh))
        for dt in range(4):
            for T in range(2):
                mfma(A, oacc(dt, T), AF + 16 * (hh & 1) + 4 * dt, OB + 4 * (2 * hh + T), oacc(dt, T))
        if hh + 2 < 4: rd_a(hh + 2)
    A.label(f"{P}_noo2")
    A("s_waitcnt lgkmcnt(0)")
    stamp(A, 11)
    A("s_barrier")
    A(f"s_lshl_b32 s66, s{S_TB}, 2")
    A("s_add_u32 s66, s66, s63")
    A("s_lshl_b32 s66, s66, 3")
    A(f"s_add_u32 s66, s66, s{S_FB}")
    A("s_lshl_b32 s66, s66, 3")
    A(f"s_add_u32 s66, s66, {WS_FZ1}")
    A("v_mov_b32 v56, 0")
    poll_all(A, P + "z", 56, 66, 1, 58)
    A(f"s_mul_i32 s66, s{S_KK}, 7168")
    A(f"s_add_u32 s66, s66, {ZRING}")
    A(f"v_add_u32 v{VZ}, s66, v{VL16}")
    A("v_and_b32 v40, 15, v0")
    A("v_lshrrev_b32 v41, 4, v0")
    A("v_lshrrev_b32 v42, 1, v41")
    A(f"s_lshl_b32 s66, s{S_KK}, 2")
    A("v_add_u32 v42, s66, v42")
    A("v_lshrrev_b32 v43, 1, v40")
    A("v_xor_b32 v42, v42, v43")
    A("v_lshlrev_b32 v42, 4, v42")
    A("v_and_b32 v41, 1, v41")
    A("v_lshl_add_u32 v42, v41, 3, v42")
    A("v_lshl_add_u32 v42, v40, 7, v42")
    A("s_lshl_b32 s66, s63, 12")
    A(f"v_add_u32 v{VW0}, s66, v42")
    A(f"v_xor_b32 v{VW1}, 32, v{VW0}")
    A(f"s_cmp_eq_u32 s{S_KH}, 0")
    A("s_cselect_b32 s66, -1, 0")
    A("v_lshlrev_b32 v7, 16, v7")
    A("v_and_b32 v7, s66, v7")

def p2_compute(A, kk, opt):
    P = f"p2c{kk}"
    bp = opt.get(f"bp{kk}", 4)
    for u in range(7):
        for T in range(2):
            for r in range(4):
                A(f"v_mov_b32 v{acc2(u,T)+r}, " + ("v7" if T == kk else "0"))
    L = LG(A)
    def w_items(par):
        out = []
        for T in range(2):
            r = WF + 8 * par + 4 * T
            out.append(('r', f"ds_read_b64 {v(r,2)}, v{VW0} offset:{2048*T}", "w"))
            out.append(('r', f"ds_read_b64 {v(r+2,2)}, v{VW1} offset:{2048*T}", "w"))
        return out
    def z_item(u): return ('r', f"ds_read_b128 {v(ZR+4*u,4)}, v{VZ} offset:{1024*u}", ("z", u))
    def mm(u, par): return [('m', f"v_mfma_f32_16x16x32_bf16 {v(acc2(u,T),4)}, {v(ZR+4*u,4)}, {v(WF+8*par+4*T,4)}, {v(acc2(u,T),4)}") for T in range(2)]
    def emit(items):
        for it in items:
            if it[0] == 'r': A(it[1]); L.issue(it[2])
            elif it[0] == 'w': L.wait(it[1])
            else: A(it[1])
    def tail_items(par, reads=True):
        rds = (w_items(1 - par) + [z_item(u) for u in range(bp)]) if reads else []
        out = []
        for u in range(bp, 7):
            out.append(('w', ("z", u)))
            for m in mm(u, par):
                out.append(m)
                for _ in range(opt.get("p2per", 2)):
                    if rds: out.append(rds.pop(0))
            if reads: rds.append(z_item(u))
        return out + rds
    def advance():
        A("s_add_u32 s66, s66, 1")
        A("s_cmp_eq_u32 s66, 5")
        A(f"s_cselect_b32 s67, {-4*WSL}, s70")
        A(f"s_cselect_b32 s68, {-4*ZSL}, s71")
        A("s_cselect_b32 s66, 0, s66")
        A(f"v_add_u32 v{VW0}, s67, v{VW0}"); A(f"v_add_u32 v{VW1}, s67, v{VW1}")
        A(f"v_add_u32 v{VZ}, s68, v{VZ}")
    def head(par):
        for u in range(bp):
            if u == 0: L.wait("w")
            L.wait(("z", u))
            emit(mm(u, par))
    A("s_mov_b32 s66, 0")
    A(f"s_mov_b32 s70, {WSL}"); A(f"s_mov_b32 s71, {ZSL}")
    stamp(A, 12)
    A("s_barrier")
    stamp(A, 13)
    emit([it for it in tail_items(1) if it[0] == 'r'])
    start = list(L.p)
    A(f"s_mov_b32 s69, 7")
    A.label(f"{P}_loop")
    for par in range(2):
        head(par)
        A("s_barrier")
        advance()
        emit(tail_items(par))
    A("s_sub_u32 s69, s69, 1")
    A("s_cmp_lg_u32 s69, 0")
    A(f"s_cbranch_scc1 {P}_loop")
    assert start == L.p, (start, L.p)
    head(0)
    A("s_barrier")
    advance()
    Z1 = 52
    A("s_lshl_b32 s72, s64, 3")
    A(f"s_add_u32 s72, s72, s{S_FB}")
    A("s_mul_i32 s72, s72, 3584")
    A(f"s_add_u32 s73, s72, {WS_Z1}")
    for p in range(3):
        A(f"buffer_load_dwordx4 {v(Z1+4*p,4)}, v{VL16}, {s(SRD_WS,4)}, s73 offen offset:{1024*p} sc1")
    A(f"buffer_load_dwordx2 {v(Z1+12,2)}, v{VL8}, {s(SRD_WS,4)}, s73 offen offset:3072 sc1")
    emit(tail_items(0))
    head(1)
    emit(tail_items(1, reads=False))
    L.wait_all()
    stamp(A, 14)
    A("s_mul_i32 s66, s63, 7168")
    A(f"s_add_u32 s67, s66, {RB1 if kk else RB0}")
    A(f"s_add_u32 s68, s66, {RB0 if kk else RB1}")
    A(f"v_add_u32 v{VZ}, s67, v{VL16}")
    A(f"v_add_u32 v{VW0}, s68, v{VL16}")
    for u in range(7):
        A(f"ds_write_b128 v{VZ}, {v(acc2(u,1-kk),4)} offset:{1024*u}")
    A("s_waitcnt lgkmcnt(0)")
    A("s_barrier")
    for u in range(7):
        A(f"ds_read_b128 {v(acc2(u,1-kk),4)}, v{VW0} offset:{1024*u}")
    A("s_waitcnt lgkmcnt(0)")
    A("s_barrier")
    stamp(A, 15)
    A(f"s_mul_i32 s66, s{S_KH}, {128*8*3584}")
    A("s_add_u32 s66, s66, s72")
    A(f"s_add_u32 s66, s66, {WS_U}")
    A("s_waitcnt vmcnt(0)")
    TM = [8 + 4 * i for i in range(8)]
    D = 40
    for u in range(7):
        a_ = acc2(u, kk); o_ = acc2(u, 1 - kk); t = TM[u]
        z = Z1 + 2 * u
        pk(A, "add", a_, ('p', a_), ('p', o_))
        pk(A, "add", a_ + 2, ('p', a_ + 2), ('p', o_ + 2))
        A(f"v_lshlrev_b32 v{t}, 16, v{z}")
        A(f"v_and_b32 v{t+1}, 0xffff0000, v{z}")
        A(f"v_lshlrev_b32 v{t+2}, 16, v{z+1}")
        A(f"v_and_b32 v{t+3}, 0xffff0000, v{z+1}")
        pk(A, "mul", a_, ('p', a_), ('p', t))
        pk(A, "mul", a_ + 2, ('p', a_ + 2), ('p', t + 2))
        d = D + 2 * u if u < 6 else 66
        cvt2(A, d, a_, a_ + 1); cvt2(A, d + 1, a_ + 2, a_ + 3)
        if u & 1:
            A(f"buffer_store_dwordx4 {v(d-2,4)}, v{VL16}, {s(SRD_WS,4)}, s66 offen offset:{1024*(u>>1)} sc1")
        if u == 6:
            A(f"buffer_store_dwordx2 {v(d,2)}, v{VL8}, {s(SRD_WS,4)}, s66 offen offset:3072 sc1")
    A("s_lshl_b32 s67, s64, 3")
    A(f"s_add_u32 s67, s67, s{S_FB}")
    A("s_lshl_b32 s67, s67, 1")
    A(f"s_add_u32 s67, s67, s{S_KH}")
    A("s_lshl_b32 s67, s67, 3")
    A(f"s_add_u32 s67, s67, {WS_FU2}")
    A("s_waitcnt vmcnt(0)")
    flag_store(A, 67, 68)
    stamp(A, 16)

def p3_compute(A, opt):
    P = "p3c"
    BR, NBF, AF = 8, 21, 100
    XR, XO, XL = 92, 96, 97
    VA3 = [2, 3, 4, 7]
    A(f"s_cmp_ge_u32 s{S_DB}, 7")
    A(f"s_cbranch_scc1 {P}_skip")
    A(f"s_and_b32 s66, s{S_W}, 1")
    A(f"s_lshr_b32 s67, s{S_W}, 1")
    A(f"s_lshl_b32 s68, s{S_TB3}, 2")
    A("s_lshl_b32 s69, s66, 1")
    A("s_add_u32 s68, s68, s69")
    A("s_mul_i32 s70, s68, 28672")
    A("s_mul_i32 s71, s67, 7168")
    A("s_add_u32 s70, s70, s71")
    A(f"s_add_u32 s70, s70, {WS_U}")
    A("s_add_u32 s71, s70, 28672")
    A(f"s_add_u32 s72, s70, {128*28672}")
    A(f"s_add_u32 s73, s71, {128*28672}")
    A("s_mul_i32 s74, s67, 28672")
    afrag_addr(A, VA3, 74, t=(100, 101, 102, 103))
    if STAMP.get("out"): srd(A, SRD_OUT, P_WS, 0x2000000)
    else: srd(A, SRD_OUT, P_OUT, 2048 * 896)
    A(f"v_lshrrev_b32 v{XL}, 3, v0")
    A(f"s_lshl_b32 s75, s{S_W}, 3")
    A(f"v_add_u32 v{XL}, s75, v{XL}")
    A(f"v_and_b32 v98, 7, v0")
    A(f"v_mul_u32_u24 v{XO}, 896, v{XL}")
    A(f"v_lshl_add_u32 v{XO}, v98, 4, v{XO}")
    A(f"s_mul_i32 s80, s{S_TB3}, {64*896}")
    A(f"s_lshl_b32 s75, s{S_DB}, 7")
    A("s_add_u32 s80, s80, s75")
    A(f"buffer_load_dwordx4 {v(XR,4)}, v{XO}, {s(SRD_X,4)}, s80 offen")
    A(f"v_mul_u32_u24 v{XL}, {RP3}, v{XL}")
    A(f"v_lshl_add_u32 v{XL}, v98, 5, v{XL}")
    stamp(A, 17)
    A("s_barrier ; BAR p3")
    stamp(A, 18)
    steps = [(0, 0), (0, 1), (0, 2), (1, 0), (1, 1), (1, 2), ('s',)]
    frs = [(j, kh, T) for j in range(7) for kh in range(2) for T in range(2)]
    reg = {f: BR + 4 * (n % NBF) for n, f in enumerate(frs)}
    vm = []
    def load_b(n):
        j, kh, T = frs[n]; st = steps[j]; r = reg[frs[n]]; sb = 70 + 2 * kh + T
        if st[0] != 's':
            A(f"buffer_load_dwordx4 {v(r,4)}, v{VL16}, {s(SRD_WS,4)}, s{sb} offen offset:{st[1]*1024} sc1" if st[0] == 0 else
              f"buffer_load_dwordx4 {v(r,4)}, v{VL16}, {s(SRD_WS,4)}, s{sb+6} offen offset:{st[1]*1024} sc1")
            vm.append(n)
        else:
            A(f"buffer_load_dwordx2 {v(r,2)}, v{VL8}, {s(SRD_WS,4)}, s{sb} offen offset:3072 sc1"); vm.append(n)
            A(f"buffer_load_dwordx2 {v(r+2,2)}, v{VL8}, {s(SRD_WS,4)}, s{sb+6} offen offset:3072 sc1"); vm.append(n)
    def vwait(n):
        idx = [i for i, x in enumerate(vm) if x == n][-1]
        A(f"s_waitcnt vmcnt({len(vm) - 1 - idx})")
        del vm[:idx + 1]
    for k in range(4): A(f"s_add_u32 s{76+k}, s{70+k}, 3584")
    nb = 0
    while nb < NBF: load_b(nb); nb += 1
    L = LG(A)
    def rd_a(j):
        st = steps[j]
        out = []
        for dt in range(4):
            for b in range(2):
                r = AF + 16 * (j & 1) + 4 * dt + 2 * b
                if st[0] == 's': row = 112 * b + 96
                else: row = 112 * st[0] + 32 * st[1] + 16 * b
                out.append((f"ds_read_b64_tr_b16 {v(r,2)}, v{VA3[dt]} offset:{row*128}", ("a", j)))
        return out
    for tx, tg in rd_a(0): A(tx); L.issue(tg)
    for j in range(7):
        myf = [n for n, f in enumerate(frs) if f[0] == j]
        fill = rd_a(j + 1) if j + 1 < 7 else []
        L.wait(("a", j))
        for n in myf:
            _, kh, T = frs[n]
            vwait(n)
            for dt in range(4):
                mfma(A, oacc(dt, T), AF + 16 * (j & 1) + 4 * dt, reg[frs[n]], oacc(dt, T))
                if fill:
                    tx, tg = fill.pop(0); A(tx); L.issue(tg)
        assert not fill
        cons = myf[-1] + 1
        while nb < len(frs) and nb < cons + NBF:
            load_b(nb); nb += 1
    stamp(A, 19)
    A("v_and_b32 v20, 15, v0")
    A("v_lshrrev_b32 v21, 4, v0")
    A(f"v_mul_u32_u24 v20, {RP3}, v20")
    A("v_lshl_add_u32 v20, v21, 4, v20")
    A(f"s_mul_i32 s76, s66, {32*RP3}")
    A(f"s_mul_i32 s77, s67, {64*RP3}")
    A("s_add_u32 s76, s76, s77")
    A("v_add_u32 v20, s76, v20")
    A("s_waitcnt lgkmcnt(0)")
    A("s_barrier ; BAR p3a")
    for T in range(2):
        for dt in range(4):
            A(f"ds_write_b128 v20, {v(oacc(dt,T),4)} offset:{T*16*RP3 + dt*64}")
    A("s_waitcnt lgkmcnt(0)")
    A("s_barrier ; BAR p3b")
    for kq in range(4):
        A(f"ds_read_b128 {v(32+8*kq,4)}, v{XL} offset:{kq*64*RP3}")
        A(f"ds_read_b128 {v(36+8*kq,4)}, v{XL} offset:{kq*64*RP3+16}")
    for k in range(4):
        A(f"v_lshlrev_b32 v{24+2*k}, 16, v{XR+k}")
        A(f"v_and_b32 v{25+2*k}, 0xffff0000, v{XR+k}")
    A("s_waitcnt lgkmcnt(0)")
    for k in range(4):
        pk(A, "add", 32 + 2 * k, ('p', 32 + 2 * k), ('p', 40 + 2 * k))
        pk(A, "add", 48 + 2 * k, ('p', 48 + 2 * k), ('p', 56 + 2 * k))
    for k in range(4):
        pk(A, "add", 32 + 2 * k, ('p', 32 + 2 * k), ('p', 48 + 2 * k))
    for k in range(4):
        pk(A, "add", 32 + 2 * k, ('p', 32 + 2 * k), ('p', 24 + 2 * k))
    for k in range(4):
        cvt2(A, 32 + k, 32 + 2 * k, 33 + 2 * k)
    if STAMP.get("out"):
        A("s_add_u32 s80, s80, 0x1700000")
    A(f"buffer_store_dwordx4 v[32:35], v{XO}, {s(SRD_OUT,4)}, s80 offen")
    stamp(A, 20)
    A.label(f"{P}_skip")

IMG = 52
def img_voff(A, dst):
    A(f"v_lshrrev_b32 v{dst}, 3, v0")
    A(f"v_mul_u32_u24 v{dst}, 896, v{dst}")
    A("v_bfe_u32 v20, v0, 1, 2")
    A("v_lshrrev_b32 v21, 4, v0")
    A("v_xor_b32 v20, v20, v21")
    A(f"v_lshl_add_u32 v{dst}, v20, 5, v{dst}")
    A("v_and_b32 v20, 1, v0")
    A(f"v_lshl_add_u32 v{dst}, v20, 4, v{dst}")
    A(f"s_lshl_b32 s72, s{S_DB}, 7")
    A(f"v_add_u32 v{dst}, s72, v{dst}")

def loader_rest(A, ell, opt):
    P = f"lr{ell}"
    rot = opt.get("rot", True)
    srd(A, SRD_WO, P_WO, 448 * 896)
    srd(A, SRD_WSP, P_WSP, 2048 * 4096)
    srd(A, SRD_WOUT, P_WOUT, 896 * 896)
    img_voff(A, 8)
    A(f"s_mov_b32 s68, 0")
    if rot:
        A("s_bfe_u32 s68, s2, 0x10001")
        A("s_lshl_b32 s68, s68, 3")
    if ell < 2:
        npc = 8
        A("v_lshrrev_b32 v9, 3, v0")
        A("v_lshrrev_b32 v10, 4, v0")
        A("v_and_b32 v11, 7, v0")
        A("v_xor_b32 v11, v11, v10")
        A("v_xor_b32 v12, 4, v11")
        A("v_lshlrev_b32 v9, 12, v9")
        A("v_lshl_add_u32 v13, v11, 4, v9")
        A("v_lshl_add_u32 v14, v12, 4, v9")
        A("v_add_u32 v14, 32768, v14")
        A(f"s_lshl_b32 s74, s{S_TB}, 19")
        A(f"s_lshl_b32 s75, s{S_KH}, 11")
        A("s_add_u32 s74, s74, s75")
        if ell: A(f"s_add_u32 s74, s74, {4*65536}")
        A("s_lshl_b32 s75, s68, 7")
        A("s_add_u32 s74, s74, s75")
        A("s_mov_b32 s70, 128")
        for m in range(1, 4): A(f"s_add_u32 s{74+m}, s74, {m*65536}")
        def issue():
            for m in range(4):
                for par in range(2):
                    A(f"s_add_u32 m0, s64, {WRING + (2*(4*ell+m)+par)*1024}")
                    A(f"buffer_load_dwordx4 v{13+par}, {s(SRD_WSP,4)}, s{74+m} offen lds")
            A("s_add_u32 s68, s68, 1")
            A("s_and_b32 s68, s68, 15")
            A(f"s_cselect_b32 s69, s70, {128-2048}")
            for m in range(4): A(f"s_add_u32 s{74+m}, s{74+m}, s69")
            A(f"s_add_u32 s64, s64, {WSL}")
            A(f"s_cmp_eq_u32 s64, {WSL*5}")
            A("s_cselect_b32 s64, 0, s64")
    else:
        npc = 7
        kk = ell - 2
        A("v_lshlrev_b32 v13, 4, v0")
        A(f"s_mul_i32 s74, s{S_KH}, {32*56*1024}")
        A(f"s_mul_i32 s75, s{S_FB}, {7*1024}")
        A("s_add_u32 s74, s74, s75")
        A(f"s_add_u32 s74, s74, {WS_Z2N + kk*56*1024}")
        A(f"s_mul_i32 s75, s68, {2*56*1024}")
        A("s_add_u32 s74, s74, s75")
        A(f"s_mov_b32 s70, {2*56*1024}")
        A("s_add_u32 s75, s74, 4096")
        A(f"s_lshl_b32 s78, s{S_FB}, 9")
        A(f"s_lshl_b32 s79, s{S_KH}, 8")
        A("s_add_u32 s78, s78, s79")
        A(f"s_add_u32 s78, s78, {WS_FZ2}")
        A("v_and_b32 v15, 31, v0")
        A("v_lshlrev_b32 v15, 3, v15")
        A("s_mov_b64 s[80:81], 0")
        A(f"s_mov_b32 s{S_PC}, {POLL_MAX}")
        cnt = [0]
        def issue():
            cnt[0] += 1
            Q = f"{P}_z{cnt[0]}"
            A("s_lshl_b32 s82, s68, 1")
            if kk: A("s_add_u32 s82, s82, 1")
            A.label(f"{Q}_chk")
            A("s_bitcmp1_b64 s[80:81], s82")
            A(f"s_cbranch_scc1 {Q}_ok")
            A(f"s_cmp_eq_u32 s{S_PC}, 0")
            A(f"s_cbranch_scc1 {Q}_ok")
            A(f"s_sub_u32 s{S_PC}, s{S_PC}, 1")
            A(f"buffer_load_dwordx2 v[16:17], v15, {s(SRD_WS,4)}, s78 offen sc1")
            A("s_waitcnt vmcnt(0)")
            A(f"v_cmp_eq_u32 vcc, s{S_TAG}, v16")
            A(f"v_cmp_eq_u32 s[90:91], s{S_TAG+1}, v17")
            A("s_and_b64 s[80:81], vcc, s[90:91]")
            A(f"s_branch {Q}_chk")
            A.label(f"{Q}_ok")
            for u in range(7):
                if u % 4 == 0: A(f"s_add_u32 m0, s64, {ZRING + kk*7168 + u*1024}")
                A(f"buffer_load_dwordx4 v13, {s(SRD_WS,4)}, s{74 + (u>>2)} offen offset:{(u&3)*1024} sc1 lds")
            A("s_add_u32 s68, s68, 1")
            A("s_and_b32 s68, s68, 15")
            A(f"s_cselect_b32 s69, s70, {(2-32)*56*1024}")
            for m in range(2): A(f"s_add_u32 s{74+m}, s{74+m}, s69")
            A(f"s_add_u32 s64, s64, {ZSL}")
            A(f"s_cmp_eq_u32 s64, {ZSL*5}")
            A("s_cselect_b32 s64, 0, s64")
    A("s_mov_b32 s64, 0")
    if ell < 2:
        for _ in range(0 if opt.get("noW") else 5): issue()
    elif opt.get("nowo"): pass
    else:
        A(f"s_cmp_ge_u32 s{S_DB}, 7")
        A(f"s_cbranch_scc1 {P}_nowo")
        for pc in range(ell - 2, 57, 2):
            A(f"s_mov_b32 m0, {WOIMG + pc*1024}")
            A(f"s_mov_b32 s73, {pc*8*896}")
            A(f"buffer_load_dwordx4 v8, {s(SRD_WO,4)}, s73 offen lds")
        A.label(f"{P}_nowo")
    stamp(A, 20)
    A(f"s_cmp_ge_u32 s{S_DB}, 7")
    A(f"s_cbranch_scc1 {P}_noimg")
    for k in range(0 if opt.get("noimg") else 28):
        A(f"s_mov_b32 s73, {(28*ell + k)*8*896}")
        A(f"buffer_load_dwordx4 {v(IMG+4*k,4)}, v8, {s(SRD_WOUT,4)}, s73 offen")
    A.label(f"{P}_noimg")
    stamp(A, 21)
    if ell >= 2: A("s_waitcnt vmcnt(0)" if opt.get("noimg") else "s_waitcnt vmcnt(28)")
    stamp(A, 11)
    A("s_barrier")
    A("s_barrier")
    stamp(A, 12)
    if ell < 2:
        A("s_waitcnt vmcnt(0)")
        A("s_barrier")
        stamp(A, 13)
        A("s_barrier")
        A("s_barrier")
        A("s_mov_b32 s65, 11")
        A.label(f"{P}_loop")
        issue()
        A(f"s_waitcnt vmcnt({2*npc})")
        A("s_barrier")
        A("s_sub_u32 s65, s65, 1")
        A("s_cmp_lg_u32 s65, 0")
        A(f"s_cbranch_scc1 {P}_loop")
        A(f"s_waitcnt vmcnt({npc})")
        A("s_barrier")
        A("s_waitcnt vmcnt(0)")
        A("s_barrier")
    else:
        issue(); issue(); issue()
        A(f"s_waitcnt vmcnt({2*npc})")
        A("s_barrier")
        stamp(A, 13)
        A("s_mov_b32 s65, 13")
        A.label(f"{P}_loop")
        issue()
        A(f"s_waitcnt vmcnt({2*npc})")
        A("s_barrier")
        A("s_sub_u32 s65, s65, 1")
        A("s_cmp_lg_u32 s65, 0")
        A(f"s_cbranch_scc1 {P}_loop")
        A(f"s_waitcnt vmcnt({npc})")
        A("s_barrier")
        A("s_waitcnt vmcnt(0)")
        A("s_barrier")
    stamp(A, 14)
    A("s_barrier")
    A("s_barrier")
    A(f"s_cmp_ge_u32 s{S_DB}, 7")
    A(f"s_cbranch_scc1 {P}_end")
    A("v_lshlrev_b32 v9, 4, v0")
    A(f"v_add_u32 v9, {28*ell*1024}, v9")
    for k in range(28):
        A(f"ds_write_b128 v9, {v(IMG+4*k,4)} offset:{k*1024}")
    if ell == 0:
        A(f"s_lshl_b32 s72, s{S_TB3}, 9")
        A(f"s_add_u32 s72, s72, {WS_FU2}")
        A("v_lshlrev_b32 v15, 3, v0")
        poll_all(A, P + "u", 15, 72, 64, 16)
    A("s_waitcnt lgkmcnt(0)")
    stamp(A, 17)
    A("s_barrier")
    A.label(f"{P}_end")

def gen_f(opt, kidx=0, name="f_kernel"):
    A = Asm()
    prologue(A, "f_end")
    stamp_init(A)
    wg_map(A)
    A(f"s_cmp_ge_u32 s{S_W}, 8")
    A("s_cbranch_scc1 f_load")
    A(f"s_cmp_ge_u32 s{S_C}, 8")
    A("s_cbranch_scc1 f_cB")
    compute_p1(A, "A", 0, opt)
    A("s_branch f_cg")
    A.label("f_cB")
    A(f"s_cmp_ge_u32 s{S_W}, 4")
    A("s_cbranch_scc1 f_cB1")
    compute_p1(A, "B", 0, opt)
    A("s_branch f_cg")
    A.label("f_cB1")
    compute_p1(A, "B", 1, opt)
    A.label("f_cg")
    compute_gap(A, opt)
    A(f"s_cmp_ge_u32 s{S_W}, 4")
    A("s_cbranch_scc1 f_p2b")
    p2_compute(A, 0, opt)
    A("s_branch f_p3")
    A.label("f_p2b")
    p2_compute(A, 1, opt)
    A.label("f_p3")
    p3_compute(A, opt)
    stamp_flush12(A, kidx)
    A("s_endpgm")
    A.label("f_load")
    for typ in "AB":
        if typ == "A":
            A(f"s_cmp_ge_u32 s{S_C}, 8")
            A("s_cbranch_scc1 f_lB")
        else:
            A.label("f_lB")
        for ell in range(4):
            if ell < 3:
                A(f"s_cmp_lg_u32 s{S_W}, {8+ell}")
                A(f"s_cbranch_scc1 f_l{typ}{ell+1}")
            loader_p1(A, typ, ell, opt)
            A(f"s_branch f_lr{ell}")
            if ell < 3: A.label(f"f_l{typ}{ell+1}")
    for ell in range(4):
        A.label(f"f_lr{ell}")
        loader_rest(A, ell, opt)
        stamp_flush12(A, kidx)
        A("s_endpgm")
    A.label("f_end")
    A("s_endpgm")
    return (name, A.text(), 256, 768, F_LDS, 168)
```

```python
from gl import *

LX, LW = 0, 55296
XSA, XSB, WSA, WSB = 18432, 16384, 24576, 28672
LA1 = 153600; LB1 = LA1 + 576; LCS = 154752; LNON = 155648; LSC = 155712
F_LDS = 163840
POLL_MAX = 40000
S_W, S_I, S_C, S_G, S_PC, S_J, S_RG, S_LC, S_SL = 3, 52, 53, 54, 55, 56, 57, 58, 59
S_TAG = 60
T4 = (64, 65, 66, 67)
S_TB, S_FB, S_KH, S_TB3, S_DB, S_FLG = 4, 5, 6, 7, 30, 31
SRD_WSP, SRD_WO, SRD_WOUT, SRD_BSP, SRD_OUT = 36, 40, 32, 36, 40
WRING, ZRING, WSL, ZSL = 0, 81920, 16384, 14336
WOIMG = 105472
NDEF = 9
RP3 = 272
WS_FZ2 = WS_FZ
WS_FZ1 = WS_FZ + 0x1000
WS_FO2 = WS_FZ + 0x2000
WS_FU2 = WS_FZ + 0x4000
SRD_X, SRD_W, SRD_WS, SRD_DBG = 32, 36, 44, 48
BIG = 0x7ff00000

class LG(Lgkm):
    def issue(self, tag): self.p.append(tag)
    def wait(self, tag):
        idx = [i for i, t in enumerate(self.p) if t == tag]
        if not idx: return
        idx = idx[-1]
        n = min(len(self.p) - 1 - idx, 15)
        self.A(f"s_waitcnt lgkmcnt({n})")
        self.p = self.p[len(self.p) - n:] if n else []

def cvt2(A, d, lo, hi): A(f"v_cvt_pk_bf16_f32 v{d}, v{lo}, v{hi}")
def lane_mask(fn):
    m = 0
    for l in range(64):
        if fn(l >> 4, l & 15): m |= 1 << l
    return m
def smask(A, sr, m):
    A(f"s_mov_b32 s{sr}, {hex(m & 0xffffffff)}")
    A(f"s_mov_b32 s{sr+1}, {hex(m >> 32)}")

def wg_map(A):
    t0 = 64
    A(f"s_lshr_b32 s{t0}, s2, 3")
    A(f"s_and_b32 s{S_G}, s2, 1")
    A(f"s_lshl_b32 s{S_G}, s{S_G}, 2")
    A(f"s_and_b32 s{S_I}, s{t0}, 3")
    A(f"s_add_u32 s{S_G}, s{S_G}, s{S_I}")
    A(f"s_bfe_u32 s{S_I}, s{t0}, 0x10002")
    A(f"s_lshl_b32 s{S_I}, s{S_I}, 3")
    A(f"s_add_u32 s{S_C}, s{S_G}, s{S_I}")
    A(f"s_lshr_b32 s{t0}, s{t0}, 3")
    A(f"s_bfe_u32 s{S_I}, s2, 0x20001")
    A(f"s_lshl_b32 s{S_I}, s{S_I}, 2")
    A(f"s_add_u32 s{S_I}, s{S_I}, s{t0}")
    A(f"s_bfe_u32 s{S_KH}, s2, 0x10002")
    A(f"s_bfe_u32 s{t0}, s2, 0x20003")
    A(f"s_and_b32 s{S_TB}, s2, 3")
    A(f"s_lshl_b32 s{S_TB}, s{S_TB}, 2")
    A(f"s_add_u32 s{S_TB}, s{S_TB}, s{t0}")
    A(f"s_lshr_b32 s{S_FB}, s2, 5")
    A(f"s_and_b32 s{S_TB3}, s2, 7")
    A(f"s_lshl_b32 s{S_TB3}, s{S_TB3}, 2")
    A(f"s_add_u32 s{S_TB3}, s{S_TB3}, s{t0}")
    A(f"s_mov_b32 s{S_DB}, s{S_FB}")

def flag_store(A, sreg, vt):
    A(f"v_mov_b32 v{vt}, s{S_TAG}")
    A(f"v_mov_b32 v{vt+1}, s{S_TAG+1}")
    A(f"v_mov_b32 v{vt+2}, 0")
    A("s_mov_b64 exec, 1")
    A(f"buffer_store_dwordx2 {v(vt,2)}, v{vt+2}, {s(SRD_WS,4)}, s{sreg} offen sc1")
    A("s_mov_b64 exec, -1")

PRB = 56
def rows_load(A):
    R = PRB; t0 = 64; va, vb = R + 24, R + 25
    A(f"s_lshl_b32 s{t0}, s{S_I}, 4")
    A(f"s_add_u32 s{t0}, s{t0}, s{S_C}")
    A(f"s_lshl_b32 s{t0}, s{t0}, 2")
    A(f"s_add_u32 s{t0}, s{t0}, s{S_RG}")
    A(f"s_mul_i32 s{t0}, s{t0}, 1792")
    A(f"v_lshlrev_b32 v{va}, 4, v0")
    A(f"v_mov_b32 v{vb}, {hex(BIG)}")
    A(f"v_cmp_gt_u32 vcc, 56, v0")
    A(f"v_cndmask_b32 v{va}, v{vb}, v{va}, vcc")
    A(f"buffer_load_dwordx4 {v(R,4)}, v{va}, {s(SRD_X,4)}, s{t0} offen")
    A(f"buffer_load_dwordx4 {v(R+4,4)}, v{va}, {s(SRD_X,4)}, s{t0} offen offset:896")

def rows_compute(A):
    R = PRB; ones = R + 24
    A(f"v_mov_b32 v{ones}, 0x3f803f80")
    S_ = [R + 30, R + 31, R + 32, R + 33]
    for k in range(4): A(f"v_mov_b32 v{S_[k]}, 0")
    for d in range(4):
        for rr in range(2):
            x = R + 4 * rr + d
            A(f"v_dot2_f32_bf16 v{S_[2*rr]}, v{x}, v{ones}, v{S_[2*rr]}")
            A(f"v_dot2_f32_bf16 v{S_[2*rr+1]}, v{x}, v{x}, v{S_[2*rr+1]}")
    dpp_row_allreduce(A, S_)
    allreduce_rows(A, "add", S_, [R + 34, R + 35, R + 36, R + 37])
    A(f"v_cmp_eq_u32 vcc, 1, v0")
    A(f"v_cndmask_b32 v{S_[0]}, v{S_[0]}, v{S_[2]}, vcc")
    A(f"v_cndmask_b32 v{S_[1]}, v{S_[1]}, v{S_[3]}, vcc")
    A(f"v_mul_f32 v{S_[0]}, {fhex(1/448)}, v{S_[0]}")
    A(f"v_mul_f32 v{S_[1]}, {fhex(1/448)}, v{S_[1]}")
    A(f"v_fma_f32 v{S_[1]}, -v{S_[0]}, v{S_[0]}, v{S_[1]}")
    A(f"v_max_f32 v{S_[1]}, 0, v{S_[1]}")
    A(f"v_add_f32 v{S_[1]}, {fhex(1e-5)}, v{S_[1]}")
    A(f"v_rsq_f32 v{R+26}, v{S_[1]}")
    A(f"v_mul_f32 v{R+27}, v{S_[0]}, v{R+26}")
    A(f"v_sub_f32 v{R+27}, 0, v{R+27}")

def rows_publish(A):
    R = PRB; t0 = 64; G = R + 30
    A(f"s_lshl_b32 s{t0}, s{S_I}, 4")
    A(f"s_add_u32 s{t0}, s{t0}, s{S_C}")
    A(f"s_lshl_b32 s{t0}, s{t0}, 2")
    A(f"s_add_u32 s{t0}, s{t0}, s{S_RG}")
    A(f"s_lshl_b32 s{t0}, s{t0}, 5")
    A(f"s_add_u32 s{t0}, s{t0}, {WS_ST1}")
    A(f"v_mov_b32 v{G}, v{R+26}")
    A(f"v_mov_b32 v{G+1}, v{R+27}")
    A(f"v_mov_b32 v{G+2}, s{S_TAG}")
    A(f"v_mov_b32 v{G+3}, s{S_TAG+1}")
    A(f"v_lshlrev_b32 v{R+34}, 4, v0")
    A(f"s_mov_b64 exec, 3")
    A(f"buffer_store_dwordx4 {v(G,4)}, v{R+34}, {s(SRD_WS,4)}, s{t0} offen sc1")
    A(f"s_mov_b64 exec, -1")

def cols_load(A, typ, skip):
    R = PRB; t0, t1, t2, t3 = T4; va, vb = R + 24, R + 25
    nt = 12 if typ == "A" else 14
    A(f"s_cmp_ge_u32 s{S_I}, {nt}")
    A(f"s_cbranch_scc1 {skip}")
    if typ == "A":
        stride = 2688
        A(f"s_lshr_b32 s{t0}, s{S_I}, 2")
        A(f"s_mul_i32 s{t0}, s{t0}, 896")
        A(f"s_mul_i32 s{t1}, s{S_G}, 112")
        A(f"s_add_u32 s{t0}, s{t0}, s{t1}")
        A(f"s_bfe_u32 s{t1}, s{S_I}, 0x10001")
        A(f"s_mul_i32 s{t1}, s{t1}, 56")
        A(f"s_add_u32 s{t0}, s{t0}, s{t1}")
        A(f"s_and_b32 s{t1}, s{S_I}, 1")
        A(f"s_lshl_b32 s{t1}, s{t1}, 5")
        A(f"s_add_u32 s{t0}, s{t0}, s{t1}")
    else:
        stride = 3584
        A(f"s_mul_i32 s{t0}, s{S_G}, 224")
        A(f"s_lshl_b32 s{t1}, s{S_I}, 5")
        A(f"s_add_u32 s{t0}, s{t0}, s{t1}")
        A(f"s_cmp_lt_u32 s{S_I}, 7")
        csel(A, t1, 1792, -224)
        A(f"s_add_u32 s{t0}, s{t0}, s{t1}")
    A(f"s_mul_i32 s{t2}, s{S_RG}, {112*stride}")
    A(f"s_add_u32 s{t0}, s{t0}, s{t2}")
    A(f"v_lshrrev_b32 v{va}, 1, v0")
    A(f"v_mul_u32_u24 v{va}, {stride}, v{va}")
    A(f"v_and_b32 v{vb}, 1, v0")
    A(f"v_lshl_add_u32 v{va}, v{vb}, 4, v{va}")
    for m in range(4):
        if m == 3:
            A(f"v_mov_b32 v{vb}, {hex(BIG)}")
            A(f"v_cmp_gt_u32 vcc, 32, v0")
            A(f"v_cndmask_b32 v{va}, v{vb}, v{va}, vcc")
        A(f"buffer_load_dwordx4 {v(R+8+4*m,4)}, v{va}, {s(SRD_W,4)}, s{t0} offen")
        if m < 3: A(f"s_add_u32 s{t0}, s{t0}, {32*stride}")
    A.label(skip)

def cols_compute(A, typ, skip):
    R = PRB
    nt = 12 if typ == "A" else 14
    A(f"s_cmp_ge_u32 s{S_I}, {nt}")
    A(f"s_cbranch_scc1 {skip}")
    lo, hi = R + 0, R + 1
    A(f"v_mov_b32 v{lo}, 0x00003f80")
    A(f"v_mov_b32 v{hi}, 0x3f800000")
    acc = [R + 30 + k for k in range(8)]
    for k in range(8): A(f"v_mov_b32 v{acc[k]}, 0")
    for m in range(4):
        for d in range(4):
            x = R + 8 + 4 * m + d
            A(f"v_dot2_f32_bf16 v{acc[2*d]}, v{x}, v{lo}, v{acc[2*d]}")
            A(f"v_dot2_f32_bf16 v{acc[2*d+1]}, v{x}, v{hi}, v{acc[2*d+1]}")
    dpp_row_allreduce(A, acc, steps=(8, 4, 2))
    allreduce_rows(A, "add", acc, [R + 2 + k for k in range(8)])
    A(f"v_lshrrev_b32 v{R+2}, 1, v0")
    A(f"v_mov_b32 v{R+28}, v{acc[0]}")
    A(f"v_mov_b32 v{R+29}, v{acc[1]}")
    for d in range(1, 4):
        A(f"v_cmp_eq_u32 vcc, {d}, v{R+2}")
        A(f"v_cndmask_b32 v{R+28}, v{R+28}, v{acc[2*d]}, vcc")
        A(f"v_cndmask_b32 v{R+29}, v{R+29}, v{acc[2*d+1]}, vcc")
    A.label(skip)

def cols_publish(A, typ, skip):
    R = PRB; t0 = 64
    nt = 12 if typ == "A" else 14
    A(f"s_cmp_ge_u32 s{S_I}, {nt}")
    A(f"s_cbranch_scc1 {skip}")
    A(f"s_mul_i32 s{t0}, s{S_C}, 14")
    A(f"s_add_u32 s{t0}, s{t0}, s{S_I}")
    A(f"s_lshl_b32 s{t0}, s{t0}, 2")
    A(f"s_add_u32 s{t0}, s{t0}, s{S_RG}")
    A(f"s_lshl_b32 s{t0}, s{t0}, 7")
    A(f"s_add_u32 s{t0}, s{t0}, {WS_CS}")
    G2 = R + 36
    A(f"v_mov_b32 v{G2}, v{R+28}")
    A(f"v_mov_b32 v{G2+1}, v{R+29}")
    A(f"v_mov_b32 v{G2+2}, s{S_TAG}")
    A(f"v_mov_b32 v{G2+3}, s{S_TAG+1}")
    A(f"v_and_b32 v{R+35}, 1, v0")
    A(f"v_lshrrev_b32 v{R+34}, 1, v0")
    A(f"v_lshl_add_u32 v{R+34}, v{R+35}, 2, v{R+34}")
    A(f"v_lshlrev_b32 v{R+34}, 4, v{R+34}")
    A(f"s_mov_b64 exec, 0xff")
    A(f"buffer_store_dwordx4 {v(G2,4)}, v{R+34}, {s(SRD_WS,4)}, s{t0} offen sc1")
    A(f"s_mov_b64 exec, -1")
    A.label(skip)

def kperm16(A, rho, out, t):
    A(f"v_and_b32 v{out}, 3, v{rho}")
    A(f"v_lshrrev_b32 v{t}, 2, v{rho}")
    A(f"v_lshl_add_u32 v{out}, v{t}, 3, v{out}")

def voff_wq(A, beta, dst, t, s_col):
    n, rho, c, k = t
    A(f"v_add_u32 v{n}, {64*beta}, v0")
    m = magic_div(24, 384)
    A(f"v_mul_u32_u24 v{rho}, {m}, v{n}")
    A(f"v_lshrrev_b32 v{rho}, 16, v{rho}")
    A(f"v_mul_u32_u24 v{c}, 24, v{rho}")
    A(f"v_sub_u32 v{c}, v{n}, v{c}")
    kperm16(A, rho, k, n)
    A(f"v_mul_u32_u24 v{dst}, 2688, v{k}")
    A(f"v_bfe_u32 v{k}, v{rho}, 1, 2")
    A(f"v_lshrrev_b32 v{n}, 1, v{c}")
    A(f"v_xor_b32 v{n}, v{n}, v{k}")
    A(f"v_lshrrev_b32 v{k}, 2, v{n}")
    A(f"v_mul_u32_u24 v{k}, 896, v{k}")
    A(f"v_add_u32 v{dst}, v{dst}, v{k}")
    A(f"v_bfe_u32 v{k}, v{n}, 1, 1")
    A(f"v_mul_u32_u24 v{k}, 56, v{k}")
    A(f"v_add_u32 v{dst}, v{dst}, v{k}")
    A(f"v_and_b32 v{n}, 1, v{n}")
    A(f"v_lshl_add_u32 v{dst}, v{n}, 5, v{dst}")
    A(f"v_and_b32 v{c}, 1, v{c}")
    A(f"v_lshl_add_u32 v{dst}, v{c}, 4, v{dst}")
    A(f"v_add_u32 v{dst}, s{s_col}, v{dst}")

def voff_wz(A, beta, dst, t, s_col):
    n, rho, c, k = t
    A(f"v_add_u32 v{n}, {64*beta}, v0")
    m = magic_div(28, 448)
    A(f"v_mul_u32_u24 v{rho}, {m}, v{n}")
    A(f"v_lshrrev_b32 v{rho}, 16, v{rho}")
    A(f"v_mul_u32_u24 v{c}, 28, v{rho}")
    A(f"v_sub_u32 v{c}, v{n}, v{c}")
    kperm16(A, rho, k, n)
    A(f"v_mul_u32_u24 v{dst}, 3584, v{k}")
    A(f"v_bfe_u32 v{k}, v{rho}, 2, 1")
    A(f"v_lshrrev_b32 v{n}, 1, v{c}")
    A(f"v_xor_b32 v{n}, v{n}, v{k}")
    A(f"v_lshl_add_u32 v{dst}, v{n}, 5, v{dst}")
    A(f"v_mov_b32 v{k}, 1792")
    A(f"v_mov_b32 v{rho}, -224")
    A(f"v_cmp_gt_u32 vcc, 7, v{n}")
    A(f"v_cndmask_b32 v{k}, v{rho}, v{k}, vcc")
    A(f"v_add_u32 v{dst}, v{dst}, v{k}")
    A(f"v_and_b32 v{c}, 1, v{c}")
    A(f"v_lshl_add_u32 v{dst}, v{c}, 4, v{dst}")
    A(f"v_add_u32 v{dst}, s{s_col}, v{dst}")

DK = [0, 4, 32, 36]
def loader_p1(A, typ, ell, opt):
    P = f"p1{typ}l{ell}"
    isA = typ == "A"
    XS, WS_ = (XSA, WSA) if isA else (XSB, WSB)
    stride = 2688 if isA else 3584
    NB = 6 if isA else 7
    voff = voff_wq if isA else voff_wz
    t = (20, 21, 22, 23)
    A(f"s_mul_i32 s68, s{S_G}, {112 if isA else 224}")
    pieces = []
    wb = {}
    nxt = [8]
    def base(b):
        if b not in wb:
            wb[b] = nxt[0]; nxt[0] += 1
            voff(A, b, wb[b], t, 68)
        return wb[b]
    def wp(b, ms):
        r = base(b)
        for m in ms: pieces.append(("w", r, DK[m] * stride, (NB * m + b) * 1024))
    if ell < 2:
        A(f"v_lshrrev_b32 v20, 4, v0")
        A(f"v_add_u32 v20, {4*ell}, v20")
        A(f"v_and_b32 v21, 7, v0")
        A(f"v_xor_b32 v20, v20, v21")
        A(f"v_and_b32 v20, 7, v20")
        A(f"v_lshlrev_b32 v20, 4, v20")
        A(f"v_lshrrev_b32 v21, 3, v0")
        A(f"s_lshl_b32 s72, s{S_I}, 7")
        A(f"s_add_u32 s72, s72, {8*ell}")
        A(f"v_add_u32 v21, s72, v21")
        A(f"v_mul_u32_u24 v9, 896, v21")
        A(f"v_add_u32 v9, v9, v20")
        nxt[0] = 10
        if isA:
            A(f"v_subrev_u32 v21, 16, v21")
            A(f"v_max_i32 v21, 0, v21")
            A(f"v_mul_u32_u24 v8, 896, v21")
            A(f"v_add_u32 v8, v8, v20")
            for m in range(9):
                p = ell + 2 * m
                pieces.append(("x", 8 if m == 0 else 9, 0 if m == 0 else (m - 1) * 14336, p * 1024))
            wp(ell, (0, 1))
        else:
            for m in range(8):
                pieces.append(("x", 9, m * 14336, (ell + 2 * m) * 1024))
            wp(ell, (0, 1, 2))
    elif isA:
        if ell == 2: wp(2, range(4)); wp(3, range(4)); wp(0, (2, 3))
        else: wp(4, range(4)); wp(5, range(4)); wp(1, (2, 3))
    else:
        if ell == 2: wp(2, range(4)); wp(3, range(4)); wp(0, (3,)); wp(1, (3,)); wp(6, (0,))
        else: wp(4, range(4)); wp(5, range(4)); wp(6, (1, 2, 3))
    npc = len(pieces)
    A("s_waitcnt lgkmcnt(0)")
    srd(A, SRD_X, P_X, 2048 * 896)
    if isA: srd(A, SRD_W, P_WQKV, 448 * 2688)
    else: srd(A, SRD_W, P_WIN, 448 * 3584)
    srd(A, SRD_WS, P_WS, WS_BYTES)
    def issue(S_):
        if opt.get("nodma") and S_ >= 3: return
        sl = S_ % 3
        for kind, vr, so, lo in pieces:
            b, ss, step, sr = (LX, XS, 128, SRD_X) if kind == "x" else (LW, WS_, 64 * stride, SRD_W)
            A(f"s_mov_b32 m0, {b + sl * ss + lo}")
            A(f"s_mov_b32 s73, {S_ * step + so}")
            A(f"buffer_load_dwordx4 v{vr}, {s(sr,4)}, s73 offen lds")
    nt = 12 if isA else 14
    def table_loads():
        if ell < 3:
            A(f"s_lshl_b32 s72, s{S_I}, 7")
            A(f"s_add_u32 s72, s72, {64*ell}")
            A(f"v_add_u32 v24, s72, v0")
            A(f"v_subrev_u32 v24, 16, v24")
            A(f"v_max_i32 v24, 0, v24")
            A(f"v_lshlrev_b32 v24, 4, v24")
            if ell == 2:
                A(f"s_lshl_b32 s72, s{S_I}, 7")
                A(f"s_add_u32 s72, s72, 127")
                A(f"s_lshl_b32 s72, s72, 4")
                A(f"v_min_u32 v24, s72, v24")
            A(f"buffer_load_dwordx4 v[28:31], v24, {s(SRD_WS,4)}, 0 offen sc1")
        if ell >= 2:
            A(f"v_add_u32 v25, {64*(ell-2)}, v0")
            A(f"v_lshrrev_b32 v26, 3, v25")
            A(f"v_min_u32 v26, {nt-1}, v26")
            A(f"s_mul_i32 s72, s{S_C}, 14")
            A(f"v_add_u32 v26, s72, v26")
            A(f"v_lshlrev_b32 v26, 9, v26")
            A(f"v_and_b32 v25, 7, v25")
            A(f"v_lshl_add_u32 v26, v25, 4, v26")
            A(f"s_mov_b32 s72, {WS_CS}")
            for q in range(4):
                A(f"buffer_load_dwordx4 {v(32+4*q,4)}, v26, {s(SRD_WS,4)}, s72 offen offset:{128*q} sc1")
    def table_check(fail):
        regs = ([28] if ell < 3 else []) + ([32, 36, 40, 44] if ell >= 2 else [])
        first = True
        for r in regs:
            A(f"v_cmp_eq_u32 vcc, s{S_TAG}, v{r+2}")
            A(f"v_cmp_eq_u32 s[74:75], s{S_TAG+1}, v{r+3}")
            A(f"s_and_b64 vcc, vcc, s[74:75]")
            if first: A(f"s_mov_b64 s[76:77], vcc")
            else: A(f"s_and_b64 s[76:77], s[76:77], vcc")
            first = False
        A(f"s_cmp_eq_u64 s[76:77], -1")
        A(f"s_cbranch_scc0 {fail}")
    def table_write():
        if ell < 3:
            A(f"v_lshlrev_b32 v24, 2, v0")
            A(f"v_add_u32 v24, {LA1 + 256*ell}, v24")
            if ell == 2: A("s_mov_b64 exec, 0xffff")
            A(f"ds_write_b32 v24, v28")
            A(f"ds_write_b32 v24, v29 offset:{LB1-LA1}")
            if ell == 2: A("s_mov_b64 exec, -1")
        if ell >= 2:
            pk(A, "add", 32, ('p', 32), ('p', 36))
            pk(A, "add", 40, ('p', 40), ('p', 44))
            pk(A, "add", 32, ('p', 32), ('p', 40))
            A(f"v_lshlrev_b32 v24, 3, v0")
            A(f"v_add_u32 v24, {LCS + 512*(ell-2)}, v24")
            if ell == 3: A(f"s_mov_b32 exec_hi, 0xffff")
            A(f"ds_write_b64 v24, v[32:33]")
            if ell == 3: A("s_mov_b64 exec, -1")
    TL = opt.get("tl", 4)
    stamp(A, 1)
    issue(0); issue(1)
    stamp(A, 2)
    A(f"s_waitcnt vmcnt({npc})")
    stamp(A, 3)
    A("s_barrier ; BAR p1")
    issue(2)
    A(f"v_mov_b32 v24, {LNON}")
    A("ds_read_b64 v[26:27], v24")
    A("s_waitcnt lgkmcnt(0)")
    A(f"v_readfirstlane_b32 s{S_TAG}, v26")
    A(f"v_readfirstlane_b32 s{S_TAG+1}, v27")
    A(f"s_mov_b32 s{S_PC}, {POLL_MAX}")
    for n in range(1, 7):
        if n == TL + 1:
            A("s_waitcnt vmcnt(0)" if n + 1 > 6 or True else "")
            table_check(f"{P}_retry")
            A.label(f"{P}_tok")
            table_write()
            A("s_waitcnt lgkmcnt(0)")
        else:
            A(f"s_waitcnt vmcnt({npc if n + 1 <= 6 else 0})")
        stamp(A, 3 + n)
        A("s_barrier ; BAR p1")
        if n == TL: table_loads()
        if n + 2 <= 6: issue(n + 2)
    A("s_barrier ; BAR p1")
    stamp(A, 10)
    A(f"s_branch {P}_done")
    A.label(f"{P}_retry")
    A(f"s_sub_u32 s{S_PC}, s{S_PC}, 1")
    A(f"s_cmp_eq_u32 s{S_PC}, 0")
    A(f"s_cbranch_scc1 {P}_tok")
    table_loads()
    A("s_waitcnt vmcnt(0)")
    table_check(f"{P}_retry")
    A(f"s_branch {P}_tok")
    A.label(f"{P}_done")

VXA0, VXA1, VW0, VW1 = 2, 3, 4, 5
XF, WR, ACC = 8, 32, 96
def qreg(dt, T): return ACC + 4 * (2 * dt + T)
def kreg(dt, tau): return ACC + 16 + 4 * (3 * dt + tau)
def vreg(dt, tau): return ACC + 40 + 4 * (3 * dt + tau)
def zreg(n, T): return ACC + 4 * (2 * n + T)
def b_tiles(par):
    return [('z2' if par == 0 else 'z1', u) for u in range(7)]

def compute_addr(A, typ):
    isA = typ == "A"
    A("v_and_b32 v8, 15, v0")
    A("v_lshrrev_b32 v9, 4, v0")
    A("v_lshrrev_b32 v10, 1, v8")
    A("v_xor_b32 v10, v10, v9")
    A("v_lshlrev_b32 v10, 4, v10")
    A("v_lshl_add_u32 v10, v8, 7, v10")
    A(f"s_lshl_b32 s72, s{S_RG}, 12")
    A(f"v_add_u32 v{VXA0}, s72, v10")
    A(f"v_xor_b32 v{VXA1}, 64, v{VXA0}")
    A("v_lshrrev_b32 v10, 2, v8")
    A("v_lshl_add_u32 v10, v9, 2, v10")
    A("v_and_b32 v11, 3, v8")
    A("v_lshlrev_b32 v11, 3, v11")
    A(f"v_mul_u32_u24 v12, {384 if isA else 448}, v10")
    A(f"v_add_u32 v12, v12, v11")
    A(f"v_add_u32 v12, {LW}, v12")
    if isA:
        A("v_and_b32 v11, 1, v9")
        A("v_lshlrev_b32 v11, 1, v11")
        A("v_lshrrev_b32 v13, 3, v8")
        A("v_add_u32 v11, v11, v13")
        A(f"s_lshr_b32 s72, s{S_W}, 2")
        A(f"s_lshl_b32 s72, s72, 1")
        A(f"v_xor_b32 v11, s72, v11")
        A(f"v_lshl_add_u32 v{VW0}, v11, 5, v12")
        A(f"v_xor_b32 v11, 1, v11")
        A(f"v_lshl_add_u32 v{VW1}, v11, 5, v12")
    else:
        A("v_and_b32 v11, 1, v9")
        A(f"v_lshl_add_u32 v{VW0}, v11, 5, v12")
        A(f"v_xor_b32 v11, 1, v11")
        A(f"v_lshl_add_u32 v{VW1}, v11, 5, v12")

def main_loop(A, typ, par, P, hook0, opt={}):
    isA = typ == "A"
    XS, WS_ = (XSA, WSA) if isA else (XSB, WSB)
    stride = 384 if isA else 448
    NX = 3 if isA else 2
    F = 6 if isA else 7
    fs = 2
    L = LG(A)
    if isA:
        tl = [(sec, dt) for sec in range(3) for dt in range(2)]
        def waddr(f):
            sec, dt = tl[f]; return (VW1 if dt else VW0), sec * 128
    else:
        tl = b_tiles(par)
        def waddr(f):
            kind, u = tl[f]; t = u if kind == 'z2' else 7 + u
            return (VW1 if t & 1 else VW0), (t >> 1) * 64
    def rdX(kk):
        if opt.get("nords"): return
        for tau in range(NX):
            A(f"ds_read_b128 {v(XF + 12*kk + 4*tau, 4)}, v{VXA1 if kk else VXA0} offset:{LX + tau*2048}")
            L.issue(("x", kk))
    def rdW(f, kk):
        if opt.get("nords"): return
        ad, off = waddr(f); r = WR + 4 * f
        for sec in range(2):
            A(f"ds_read_b64_tr_b16 {v(r + 2*sec, 2)}, v{ad} offset:{off + (32*kk + 16*sec) * stride}")
            L.issue(("w", f))
    def mm(f, kk): _mm(A, f, kk)
    def _mm(A, f, kk):
        if opt.get("nomm"): return
        r = WR + 4 * f; xb = XF + 12 * kk
        if isA:
            sec, dt = tl[f]
            if sec == 0:
                for T in range(2): mfma(A, qreg(dt, T), r, xb + 4 * (T + 1), qreg(dt, T))
            elif sec == 1:
                for tau in range(3): mfma(A, kreg(dt, tau), r, xb + 4 * tau, kreg(dt, tau))
            else:
                for tau in range(3): mfma(A, vreg(dt, tau), xb + 4 * tau, r, vreg(dt, tau))
        else:
            kind, u = tl[f]
            for T in range(2):
                if kind == 'z2': mfma(A, zreg(f, T), xb + 4 * T, r, zreg(f, T))
                else: mfma(A, zreg(f, T), r, xb + 4 * T, zreg(f, T))
    def rd_items_x():
        return [] if opt.get("nords") else [('r', f"ds_read_b128 {v(XF + 4*tau, 4)}, v{VXA0} offset:{LX + tau*2048}", ("x", 0)) for tau in range(NX)]
    def rd_items_w(f):
        if opt.get("nords"): return []
        ad, off = waddr(f); r = WR + 4 * f
        return [('r', f"ds_read_b64_tr_b16 {v(r + 2*sec, 2)}, v{ad} offset:{off + 16*sec*stride}", ("w", f)) for sec in range(2)]
    rds = rd_items_x()
    for f in range(fs + 1): rds += rd_items_w(f)
    tailseq = []
    tm = []
    for f in range(fs + 1, F):
        lines = []
        _mm(lambda s_: lines.append(s_), f, 1)
        tm.append((f, lines))
    nm = sum(len(x[1]) for x in tm)
    per = 2
    for f, lines in tm:
        for ln in lines:
            tailseq.append(('m', ln))
            for _ in range(per):
                if rds: tailseq.append(rds.pop(0))
        rds += rd_items_w(f)
    tailseq += rds
    nacc = 64 if isA else 56
    for r in range(nacc): A(f"v_mov_b32 v{ACC + r}, 0")
    A(f"s_mov_b32 s70, {XS}"); A(f"s_mov_b32 s71, {-2*XS}")
    A(f"s_mov_b32 s72, {WS_}"); A(f"s_mov_b32 s73, {-2*WS_}")
    A(f"s_mov_b32 s{S_SL}, 0")
    A(f"s_mov_b32 s{S_LC}, 7")
    stamp(A, 1)
    A("s_waitcnt lgkmcnt(0)")
    dbgst(A, 4, SRD_DBG)
    A("s_barrier ; BAR p1")
    dbgst(A, 5, SRD_DBG, neg=True); dbgst(A, 6, SRD_DBG)
    stamp(A, 2)
    for it in tailseq:
        if it[0] == 'r': A(it[1]); L.issue(it[2])
    start = list(L.p)
    A.label(f"{P}_loop")
    rdX(1)
    for f in range(F):
        if f == 0: L.wait(("x", 0))
        L.wait(("w", f))
        mm(f, 0)
        rdW(f, 1)
    for f in range(fs + 1):
        if f == 0: L.wait(("x", 1))
        L.wait(("w", f))
        mm(f, 1)
        if f == 0:
            A(f"s_add_u32 s{S_SL}, s{S_SL}, 1")
            A(f"s_cmp_eq_u32 s{S_SL}, 3")
            A(f"s_cselect_b32 s68, s71, s70")
            A(f"s_cselect_b32 s69, s73, s72")
            A(f"s_cselect_b32 s{S_SL}, 0, s{S_SL}")
        if f == 1:
            A(f"v_add_u32 v{VXA0}, s68, v{VXA0}"); A(f"v_add_u32 v{VXA1}, s68, v{VXA1}")
            A(f"v_add_u32 v{VW0}, s69, v{VW0}"); A(f"v_add_u32 v{VW1}, s69, v{VW1}")
    L.wait_all()
    A("s_barrier ; BAR p1")
    A(f"s_cmp_lg_u32 s{S_LC}, 7")
    A(f"s_cbranch_scc1 {P}_nohook")
    hook0()
    A.label(f"{P}_nohook")
    if opt.get("pf", True): touch_issue(A, P)
    for it in tailseq:
        if it[0] == 'm': A(it[1])
        else: A(it[1]); L.issue(it[2])
    A(f"s_sub_u32 s{S_LC}, s{S_LC}, 1")
    A(f"s_cmp_lg_u32 s{S_LC}, 0")
    A(f"s_cbranch_scc1 {P}_loop")
    assert start == L.p, (start, L.p)
    L.wait_all()
    dbgst(A, 7 if isA else 9, SRD_DBG, neg=True); dbgst(A, 8 if isA else 10, SRD_DBG)
    stamp(A, 3)

def epilogue_A(A, P, opt):
    stf = opt.get("stflags", " sc1")
    aL, bL = 8, 11
    aq, bq = 14, 16
    ZERO, NEG = 18, 19
    aR, bR = 20, 32
    csV = 44
    csQ, csK = 48, 56
    TM = [64 + 2 * i for i in range(8)]
    SB = 80
    t0, t1, t2, t3, t4 = 4, 5, 6, 7, 46
    L = LG(A)
    A(f"v_and_b32 v{t0}, 15, v0")
    A(f"v_lshrrev_b32 v{t1}, 4, v0")
    A(f"s_lshl_b32 s72, s{S_RG}, 7")
    A(f"v_lshlrev_b32 v{t0}, 2, v{t0}")
    A(f"v_lshlrev_b32 v{t1}, 4, v{t1}")
    A(f"s_add_u32 s72, s72, {LA1}")
    A(f"v_add_u32 v{t2}, s72, v{t0}")
    A(f"v_add_u32 v{t3}, s72, v{t1}")
    A(f"s_lshr_b32 s73, s{S_W}, 2")
    A(f"s_lshl_b32 s73, s73, 7")
    A(f"s_add_u32 s73, s73, {LCS}")
    A(f"v_add_u32 v{t0}, s73, v{t0}")
    A(f"v_add_u32 v{t1}, s73, v{t1}")
    for dt in range(2):
        A(f"ds_read_b128 {v(csQ+4*dt,4)}, v{t1} offset:{64*dt}"); L.issue("q")
    for tau in range(3):
        A(f"ds_read_b32 v{aL+tau}, v{t2} offset:{64*tau}"); L.issue("q")
        A(f"ds_read_b32 v{bL+tau}, v{t2} offset:{64*tau+LB1-LA1}"); L.issue("q")
    for dt in range(2):
        A(f"ds_read_b128 {v(csK+4*dt,4)}, v{t1} offset:{256+64*dt}"); L.issue("k")
    for dt in range(2):
        A(f"ds_read_b32 v{csV+dt}, v{t0} offset:{512+64*dt}"); L.issue("v")
    L.wait("q")
    for tau in range(3):
        A(f"ds_read_b128 {v(aR+4*tau,4)}, v{t3} offset:{64*tau}"); L.issue("v")
        A(f"ds_read_b128 {v(bR+4*tau,4)}, v{t3} offset:{64*tau+LB1-LA1}"); L.issue("v")
    sc = LOG2E * 28 ** -0.5
    for T in range(2):
        A(f"v_mul_f32 v{aq+T}, {fhex(sc)}, v{aL+T+1}")
        A(f"v_mul_f32 v{bq+T}, {fhex(sc)}, v{bL+T+1}")
    tc = 0
    for dt in range(2):
        for T in range(2):
            for h in range(2):
                z = qreg(dt, T) + 2 * h; t_ = TM[tc % 8]; tc += 1
                pk(A, "mul", t_, ('p', csQ + 4 * dt + 2 * h), ('b', bq + T))
                pk(A, "fma", z, ('p', z), ('b', aq + T), ('p', t_))
    L.wait("k")
    for dt in range(2):
        for tau in range(3):
            for h in range(2):
                z = kreg(dt, tau) + 2 * h; t_ = TM[tc % 8]; tc += 1
                pk(A, "mul", t_, ('p', csK + 4 * dt + 2 * h), ('b', bL + tau))
                pk(A, "fma", z, ('p', z), ('b', aL + tau), ('p', t_))
    smask(A, 74, lane_mask(lambda g, c: g == 3))
    A(f"v_mov_b32 v{ZERO}, 0")
    A(f"v_mov_b32 v{NEG}, {fhex(-3.0e38)}")
    for T in range(2):
        d = qreg(0, T); e = qreg(1, T)
        cvt2(A, d, d, d + 1); cvt2(A, d + 1, d + 2, d + 3); cvt2(A, d + 2, e, e + 1); cvt2(A, d + 3, e + 2, e + 3)
        A(f"v_cndmask_b32 v{d+2}, v{d+2}, v{ZERO}, s[74:75]")
        A(f"v_cndmask_b32 v{d+3}, v{d+3}, v{ZERO}, s[74:75]")
    for tau in range(3):
        d = kreg(0, tau); e = kreg(1, tau)
        cvt2(A, d, d, d + 1); cvt2(A, d + 1, d + 2, d + 3); cvt2(A, d + 2, e, e + 1); cvt2(A, d + 3, e + 2, e + 3)
    for T in range(2):
        mfma(A, SB + 8 * T, kreg(0, T), qreg(0, T), None)
        mfma(A, SB + 8 * T + 4, kreg(0, T + 1), qreg(0, T), None)
    L.wait("v")
    for dt in range(2):
        for tau in range(3):
            for h in range(2):
                z = vreg(dt, tau) + 2 * h; t_ = TM[tc % 8]; tc += 1
                pk(A, "mul", t_, ('p', bR + 4 * tau + 2 * h), ('b', csV + dt))
                pk(A, "fma", z, ('p', z), ('p', aR + 4 * tau + 2 * h), ('p', t_))
    VB = vreg(0, 0)
    for dt in range(2):
        for tau in range(3):
            sb = vreg(dt, tau); d = VB + 12 * dt + 2 * tau
            cvt2(A, d, sb, sb + 1); cvt2(A, d + 1, sb + 2, sb + 3)
    MP, MC = 80, 88
    for r in range(4):
        smask(A, MC + 2 * r, lane_mask(lambda g, c: (c - 4 * g - r) >= 0 and (c - 4 * g - r) % 2 == 0 and (c - 4 * g - r) <= 14))
        smask(A, MP + 2 * r, lane_mask(lambda g, c: (4 * g + r - c) >= 2 and (c - r) % 2 == 0))
    def mask_tile(T):
        for r in range(4):
            A(f"v_cndmask_b32 v{SB+8*T+r}, v{NEG}, v{SB+8*T+r}, s[{MP+2*r}:{MP+2*r+1}]")
            A(f"v_cndmask_b32 v{SB+8*T+4+r}, v{NEG}, v{SB+8*T+4+r}, s[{MC+2*r}:{MC+2*r+1}]")
    mask_tile(1)
    A(f"s_or_b32 s72, s{S_I}, s{S_RG}")
    A(f"s_cmp_eq_u32 s72, 0")
    A(f"s_cselect_b64 s[76:77], 0, -1")
    for r in range(4):
        A(f"s_and_b64 s[{MP+2*r}:{MP+2*r+1}], s[{MP+2*r}:{MP+2*r+1}], s[76:77]")
    mask_tile(0)
    MX = [64, 65]; TX = [66, 67]
    for T in range(2):
        b = SB + 8 * T
        A(f"v_max3_f32 v{MX[T]}, v{b}, v{b+1}, v{b+2}")
        A(f"v_max3_f32 v{TX[T]}, v{b+3}, v{b+4}, v{b+5}")
    for T in range(2):
        b = SB + 8 * T
        A(f"v_max3_f32 v{MX[T]}, v{MX[T]}, v{b+6}, v{b+7}")
    for T in range(2):
        A(f"v_max_f32 v{MX[T]}, v{MX[T]}, v{TX[T]}")
    allreduce_rows(A, "max", MX, TX)
    for T in range(2):
        b = SB + 8 * T
        for h in range(4):
            pk(A, "add", b + 2 * h, ('p', b + 2 * h), ('b', MX[T]), neg=[0, 1])
    for T in range(2):
        b = SB + 8 * T
        for r in range(8): A(f"v_exp_f32 v{b+r}, v{b+r}")
    SM = [68, 70]; T2 = [72, 74]
    for T in range(2):
        b = SB + 8 * T
        pk(A, "add", SM[T], ('p', b), ('p', b + 2))
        pk(A, "add", T2[T], ('p', b + 4), ('p', b + 6))
    for T in range(2): pk(A, "add", SM[T], ('p', SM[T]), ('p', T2[T]))
    for T in range(2): A(f"v_add_f32 v{SM[T]}, v{SM[T]}, v{SM[T]+1}")
    for T in range(2):
        b = SB + 8 * T
        for h in range(4): cvt2(A, b + h, b + 2 * h, b + 2 * h + 1)
    OR_ = {(0, 0): qreg(1, 0), (0, 1): qreg(1, 1), (1, 0): kreg(1, 0), (1, 1): kreg(1, 1)}
    for T in range(2):
        for dt in range(2):
            mfma(A, OR_[(dt, T)], VB + 12 * dt + 2 * T, SB + 8 * T, None)
    allreduce_rows(A, "add", SM, TX)
    for T in range(2): A(f"v_rcp_f32 v{SM[T]}, v{SM[T]}")
    for T in range(2):
        for dt in range(2):
            o = OR_[(dt, T)]
            for h in range(2): pk(A, "mul", o + 2 * h, ('p', o + 2 * h), ('b', SM[T]))
    OF = [64, 68]
    for T in range(2):
        o0, o1 = OR_[(0, T)], OR_[(1, T)]
        cvt2(A, OF[T], o0, o0 + 1); cvt2(A, OF[T] + 1, o0 + 2, o0 + 3)
        cvt2(A, OF[T] + 2, o1, o1 + 1); cvt2(A, OF[T] + 3, o1 + 2, o1 + 3)
        A(f"v_cndmask_b32 v{OF[T]+2}, v{OF[T]+2}, v{ZERO}, s[74:75]")
        A(f"v_cndmask_b32 v{OF[T]+3}, v{OF[T]+3}, v{ZERO}, s[74:75]")
    A(f"s_lshl_b32 s72, s{S_I}, 3")
    A(f"s_lshl_b32 s73, s{S_RG}, 1")
    A(f"s_add_u32 s72, s72, s73")
    A(f"s_lshl_b32 s72, s72, 4")
    A(f"s_add_u32 s72, s72, s{S_J}")
    A(f"s_lshl_b32 s72, s72, 10")
    A(f"s_add_u32 s74, s72, {WS_O}")
    A(f"s_add_u32 s75, s74, 16384")
    A(f"s_lshl_b32 s72, s{S_I}, 2")
    A(f"s_add_u32 s72, s72, s{S_RG}")
    A(f"s_lshl_b32 s72, s72, 4")
    A(f"s_add_u32 s72, s72, s{S_J}")
    A(f"s_lshl_b32 s72, s72, 3")
    A(f"s_add_u32 s{S_FLG}, s72, {WS_FO2}")

def gelu_pairs(A, pairs, tmp, c0, S_C1, S_ONE):
    g = len(tmp)
    for b in range(0, len(pairs), g):
        grp = list(zip(pairs[b:b+g], tmp))
        for y, t in grp: pk(A, "mul", t, ('p', y), ('p', y))
        for y, t in grp: pk(A, "fma", t, ('p', t), ('s', S_C1), ('p', c0))
        for y, t in grp: pk(A, "mul", t, ('p', t), ('p', y))
        for y, t in grp:
            A(f"v_exp_f32 v{t}, v{t}"); A(f"v_exp_f32 v{t+1}, v{t+1}")
        for y, t in grp: pk(A, "add", t, ('p', t), ('s', S_ONE))
        for y, t in grp:
            A(f"v_rcp_f32 v{t}, v{t}"); A(f"v_rcp_f32 v{t+1}, v{t+1}")
        for y, t in grp: pk(A, "mul", y, ('p', y), ('p', t))

def gelu_consts(A, C0, S_C1, S_ONE):
    c0 = -2 * LOG2E * 0.7978845608028654; c1 = c0 * 0.044715
    A(f"s_mov_b32 s{S_C1}, {fhex(c1)}"); A(f"s_mov_b32 s{S_C1+1}, {fhex(c1)}")
    A(f"s_mov_b32 s{S_ONE}, 1.0"); A(f"s_mov_b32 s{S_ONE+1}, 1.0")
    A(f"v_mov_b32 v{C0}, {fhex(c0)}"); A(f"v_mov_b32 v{C0+1}, {fhex(c0)}")

def epilogue_Z2(A, P, opt):
    stf = opt.get("stflags", " sc1")
    S_C1, S_ONE = 62, 78
    aR, bR, csL, C0 = 20, 28, 36, 44
    TM = [48 + 2 * i for i in range(8)]
    SV, SV2 = 64, 72
    VL16 = 14
    t0, t1, t3 = 4, 5, 7
    if opt.get("prio", 3): A(f"s_setprio {opt.get('prio', 3)}")
    gelu_consts(A, C0, S_C1, S_ONE)
    A(f"v_and_b32 v{t0}, 15, v0")
    A(f"v_lshrrev_b32 v{t1}, 4, v0")
    A(f"s_lshl_b32 s72, s{S_RG}, 7")
    A(f"s_add_u32 s72, s72, {LA1 + 64}")
    A(f"v_lshlrev_b32 v{t0}, 2, v{t0}")
    A(f"v_lshlrev_b32 v{t1}, 4, v{t1}")
    A(f"v_add_u32 v{t3}, s72, v{t1}")
    A(f"v_add_u32 v{t0}, {LCS}, v{t0}")
    A(f"v_lshlrev_b32 v{VL16}, 4, v0")
    L = LG(A)
    for T in range(2):
        A(f"ds_read_b128 {v(aR+4*T,4)}, v{t3} offset:{64*T}"); L.issue("a")
        A(f"ds_read_b128 {v(bR+4*T,4)}, v{t3} offset:{64*T+LB1-LA1}"); L.issue("a")
    for u in range(7):
        A(f"ds_read_b32 v{csL+u}, v{t0} offset:{64*u}"); L.issue("a")
    L.wait_all()
    pairs = []; tcyc = 0
    for u in range(7):
        for T in range(2):
            for h in range(2):
                z = zreg(u, T) + 2 * h
                t = TM[tcyc % 8]; tcyc += 1
                pk(A, "mul", t, ('p', bR + 4 * T + 2 * h), ('b', csL + u))
                pk(A, "fma", z, ('p', z), ('p', aR + 4 * T + 2 * h), ('p', t))
                pairs.append(z)
    gelu_pairs(A, pairs, TM[:7], C0, S_C1, S_ONE)
    for T in range(2):
        for h in range(2):
            d1 = SV + 4 * T + 2 * h; d2 = SV2 + 4 * T + 2 * h
            for u in range(7):
                z = zreg(u, T) + 2 * h
                if u == 0:
                    pk(A, "mul", d2, ('p', z), ('p', z))
                elif u == 1:
                    pk(A, "add", d1, ('p', zreg(0, T) + 2 * h), ('p', z))
                    pk(A, "fma", d2, ('p', z), ('p', z), ('p', d2))
                else:
                    pk(A, "add", d1, ('p', d1), ('p', z))
                    pk(A, "fma", d2, ('p', z), ('p', z), ('p', d2))
    W1 = 48
    for n in range(8):
        A(f"v_add_f32_dpp v{W1+n}, v{SV+n}, v{SV+n} row_mirror row_mask:0xf bank_mask:0x3")
    for n in range(8):
        A(f"v_add_f32_dpp v{W1+n}, v{SV2+n}, v{SV2+n} row_mirror row_mask:0xf bank_mask:0xc")
    W2 = 56
    for n in range(4):
        A(f"v_add_f32_dpp v{W2+n}, v{W1+n}, v{W1+n} row_half_mirror row_mask:0xf bank_mask:0x5")
    for n in range(4):
        A(f"v_add_f32_dpp v{W2+n}, v{W1+n+4}, v{W1+n+4} row_half_mirror row_mask:0xf bank_mask:0xa")
    smask(A, 74, lane_mask(lambda g, c: c & 2))
    smask(A, 76, lane_mask(lambda g, c: c & 1))
    W3 = 60
    for n in range(2):
        A(f"v_cndmask_b32 v{W3+n}, v{W2+n}, v{W2+n+2}, s[74:75]")
        A(f"v_cndmask_b32 v{W3+2+n}, v{W2+n+2}, v{W2+n}, s[74:75]")
    for n in range(2):
        A(f"v_add_f32_dpp v{W3+n}, v{W3+2+n}, v{W3+n} quad_perm:[2,3,0,1] row_mask:0xf bank_mask:0xf")
    G = SV
    A(f"v_cndmask_b32 v{G}, v{W3}, v{W3+1}, s[76:77]")
    A(f"v_cndmask_b32 v{G+1}, v{W3+1}, v{W3}, s[76:77]")
    A(f"v_add_f32_dpp v{G}, v{G+1}, v{G} quad_perm:[1,0,3,2] row_mask:0xf bank_mask:0xf")
    A(f"v_mov_b32_dpp v{G+1}, v{G} row_ror:8 row_mask:0xf bank_mask:0xf")
    A(f"v_mov_b32 v{G+2}, s{S_TAG}")
    A(f"v_mov_b32 v{G+3}, s{S_TAG+1}")
    A(f"v_bfe_u32 v{G+4}, v0, 2, 1")
    A(f"v_lshlrev_b32 v{G+4}, 4, v{G+4}")
    A(f"v_lshrrev_b32 v{G+5}, 4, v0")
    A(f"v_lshl_add_u32 v{G+4}, v{G+5}, 2, v{G+4}")
    A(f"v_and_b32 v{G+5}, 3, v0")
    A(f"v_add_u32 v{G+4}, v{G+4}, v{G+5}")
    A(f"v_lshlrev_b32 v{G+4}, 4, v{G+4}")
    A(f"s_lshl_b32 s72, s{S_I}, 2")
    A(f"s_add_u32 s72, s72, s{S_RG}")
    A(f"s_lshl_b32 s73, s72, 12")
    A(f"s_add_u32 s73, s73, {WS_ST2}")
    A(f"s_lshl_b32 s72, s{S_G}, 9")
    A(f"s_add_u32 s72, s72, s73")
    smask(A, 74, lane_mask(lambda g, c: c < 8))
    A("s_mov_b64 exec, s[74:75]")
    A(f"buffer_store_dwordx4 {v(G,4)}, v{G+4}, {s(SRD_WS,4)}, s72 offen sc1")
    A("s_mov_b64 exec, -1")
    stamp(A, 4)
    PR = [80, 84, 88, 92]
    A(f"s_mov_b32 s{S_PC}, {POLL_MAX}")
    A.label(f"{P}_again")
    for q in range(4):
        A(f"buffer_load_dwordx4 {v(PR[q],4)}, v{VL16}, {s(SRD_WS,4)}, s73 offen offset:{1024*q} sc1")
    A("s_waitcnt vmcnt(0)")
    for q in range(4):
        A(f"v_cmp_eq_u32 vcc, s{S_TAG}, v{PR[q]+2}")
        A(f"v_cmp_eq_u32 s[76:77], s{S_TAG+1}, v{PR[q]+3}")
        A(f"s_and_b64 vcc, vcc, s[76:77]")
        if q == 0: A("s_mov_b64 s[80:81], vcc")
        else: A("s_and_b64 s[80:81], s[80:81], vcc")
    A("s_cmp_eq_u64 s[80:81], -1")
    A(f"s_cbranch_scc1 {P}_ok")
    A(f"s_sub_u32 s{S_PC}, s{S_PC}, 1")
    A(f"s_cmp_lg_u32 s{S_PC}, 0")
    A(f"s_cbranch_scc1 {P}_again")
    A.label(f"{P}_ok")
    dbgst(A, 14, SRD_DBG)
    stamp(A, 6)
    a_, b_ = PR[0], PR[1]
    pk(A, "add", PR[0], ('p', PR[0]), ('p', PR[1]))
    pk(A, "add", PR[2], ('p', PR[2]), ('p', PR[3]))
    pk(A, "add", 52, ('p', PR[0]), ('p', PR[2]))
    A("v_mov_b32 v54, v52"); A("v_mov_b32 v55, v53")
    A("v_permlane32_swap_b32 v52, v54"); A("v_permlane32_swap_b32 v53, v55")
    pk(A, "add", 52, ('p', 52), ('p', 54))
    A(f"v_mul_f32 v52, {fhex(1/896)}, v52")
    A(f"v_mul_f32 v53, {fhex(1/896)}, v53")
    A("v_fma_f32 v53, -v52, v52, v53")
    A("v_max_f32 v53, 0, v53")
    A(f"v_add_f32 v53, {fhex(1e-5)}, v53")
    A("v_rsq_f32 v53, v53")
    A("v_mul_f32 v52, v52, v53")
    A("v_sub_f32 v52, 0, v52")
    A("v_and_b32 v54, 31, v0")
    A("v_lshlrev_b32 v54, 2, v54")
    A(f"s_lshl_b32 s72, s{S_W}, 8")
    A(f"s_add_u32 s72, s72, {LSC}")
    A("v_add_u32 v54, s72, v54")
    A("ds_write_b32 v54, v53")
    A("ds_write_b32 v54, v52 offset:128")
    A("v_lshrrev_b32 v55, 4, v0")
    A("v_lshlrev_b32 v55, 4, v55")
    A("v_add_u32 v55, s72, v55")
    A("s_waitcnt lgkmcnt(0)")
    for T in range(2):
        A(f"ds_read_b128 {v(aR+4*T,4)}, v55 offset:{64*T}")
        A(f"ds_read_b128 {v(bR+4*T,4)}, v55 offset:{128+64*T}")
    A(f"s_lshl_b32 s72, s{S_I}, 2")
    A(f"s_add_u32 s72, s72, s{S_RG}")
    A(f"s_mul_i32 s72, s72, {56*1024}")
    A(f"s_mul_i32 s74, s{S_G}, {7*1024}")
    A(f"s_add_u32 s72, s72, s74")
    A(f"s_add_u32 s72, s72, {WS_Z2N}")
    A(f"s_add_u32 s73, s72, 4096")
    A("s_waitcnt lgkmcnt(0)")
    for u in range(7):
        for T in range(2):
            for h in range(2):
                z = zreg(u, T) + 2 * h
                pk(A, "fma", z, ('p', z), ('p', aR + 4 * T + 2 * h), ('p', bR + 4 * T + 2 * h))
        z = zreg(u, 0)
        cvt2(A, z, z, z + 1); cvt2(A, z + 1, z + 2, z + 3); cvt2(A, z + 2, z + 4, z + 5); cvt2(A, z + 3, z + 6, z + 7)
        if not opt.get("nost"): A(f"buffer_store_dwordx4 {v(z,4)}, v{VL16}, {s(SRD_WS,4)}, s{72 + (u >> 2)} offen offset:{1024*(u&3)}{stf}")
    A(f"s_lshl_b32 s72, s{S_I}, 2")
    A(f"s_add_u32 s72, s72, s{S_RG}")
    A(f"s_lshl_b32 s72, s72, 3")
    A(f"s_lshl_b32 s73, s{S_G}, 9")
    A(f"s_add_u32 s72, s72, s73")
    A(f"s_add_u32 s{S_FLG}, s72, {WS_FZ2}")
    stamp(A, 7)
    A("s_barrier ; BAR g0")
    A("s_waitcnt vmcnt(0)")
    flag_store(A, S_FLG, 56)
    A(f"s_mov_b32 s{S_FLG}, {hex(BIG)}")
    if opt.get("prio", 3): A("s_setprio 0")

def epilogue_Z1(A, P, opt):
    stf = opt.get("stflags", " sc1")
    S_C1, S_ONE = 62, 78
    aL, bL, csZ1, C0 = 8, 10, 12, 44
    TM = [48 + 2 * i for i in range(8)]
    VL8 = 46
    t0, t1, t2 = 4, 5, 6
    gelu_consts(A, C0, S_C1, S_ONE)
    A(f"v_and_b32 v{t0}, 15, v0")
    A(f"v_lshrrev_b32 v{t1}, 4, v0")
    A(f"s_lshl_b32 s72, s{S_RG}, 7")
    A(f"s_add_u32 s72, s72, {LA1 + 64}")
    A(f"v_lshlrev_b32 v{t0}, 2, v{t0}")
    A(f"v_lshlrev_b32 v{t1}, 4, v{t1}")
    A(f"v_add_u32 v{t2}, s72, v{t0}")
    A(f"v_add_u32 v{t1}, {LCS + 7*64}, v{t1}")
    A(f"v_lshlrev_b32 v{VL8}, 3, v0")
    L = LG(A)
    for T in range(2):
        A(f"ds_read_b32 v{aL+T}, v{t2} offset:{64*T}"); L.issue("a")
        A(f"ds_read_b32 v{bL+T}, v{t2} offset:{64*T+LB1-LA1}"); L.issue("a")
    for u in range(7):
        A(f"ds_read_b128 {v(csZ1+4*u,4)}, v{t1} offset:{64*u}"); L.issue("a")
    A(f"s_lshl_b32 s74, s{S_I}, 3")
    A(f"s_lshl_b32 s75, s{S_RG}, 1")
    A(f"s_add_u32 s74, s74, s75")
    A(f"s_lshl_b32 s74, s74, 3")
    A(f"s_add_u32 s74, s74, s{S_G}")
    A(f"s_mul_i32 s74, s74, 3584")
    A(f"s_add_u32 s74, s74, {WS_Z1}")
    A(f"s_add_u32 s75, s74, {8*3584}")
    A(f"v_lshlrev_b32 v{VL8+1}, 4, v0")
    L.wait_all()
    tcyc = 0
    for T in range(2):
        pairs = []
        for u in range(7):
            for h in range(2):
                z = zreg(u, T) + 2 * h
                t = TM[tcyc % 8]; tcyc += 1
                pk(A, "mul", t, ('p', csZ1 + 4 * u + 2 * h), ('b', bL + T))
                pk(A, "fma", z, ('p', z), ('b', aL + T), ('p', t))
                pairs.append(z)
        gelu_pairs(A, pairs, TM[:7], C0, S_C1, S_ONE)
        for p in range(3):
            z = zreg(2 * p, T); y = zreg(2 * p + 1, T); d = 64 + 16 * T + 4 * p
            cvt2(A, d, z, z + 1); cvt2(A, d + 1, z + 2, z + 3); cvt2(A, d + 2, y, y + 1); cvt2(A, d + 3, y + 2, y + 3)
        z = zreg(6, T); d = 64 + 16 * T + 12
        cvt2(A, d, z, z + 1); cvt2(A, d + 1, z + 2, z + 3)
    A(f"s_lshl_b32 s72, s{S_I}, 2")
    A(f"s_add_u32 s72, s72, s{S_RG}")
    A(f"s_lshl_b32 s72, s72, 3")
    A(f"s_add_u32 s72, s72, s{S_G}")
    A(f"s_lshl_b32 s72, s72, 3")
    A(f"s_add_u32 s{S_FLG}, s72, {WS_FZ1}")
    stamp(A, 5)
    A("s_barrier ; BAR g0")

S_TK, S_TO = 92, 93
def touch_setup(A, P):
    VT = 161
    A(f"s_lshr_b32 s64, s2, 3")
    A(f"s_lshr_b32 s65, s{S_W}, 1")
    A(f"s_sub_u32 s{S_TK}, 6, s65")
    A(f"s_mov_b32 s{S_TO+1}, {hex(BIG)}")
    A(f"s_cmp_ge_u32 s{S_W}, 4")
    A(f"s_cbranch_scc1 {P}_t4")
    srd(A, 40, P_WSP, 2048 * 4096)
    A(f"s_and_b32 s65, s2, 3")
    A(f"s_lshl_b32 s65, s65, 9")
    A(f"s_lshl_b32 s66, s64, 4")
    A(f"s_add_u32 s65, s65, s66")
    A(f"s_lshl_b32 s66, s{S_W}, 2")
    A(f"s_add_u32 s65, s65, s66")
    A(f"s_lshl_b32 s65, s65, 12")
    A(f"s_lshl_b32 s66, s{S_KH}, 11")
    A(f"s_add_u32 s{S_TO}, s65, s66")
    A(f"v_lshrrev_b32 v{VT}, 4, v0")
    A(f"v_lshlrev_b32 v{VT}, 12, v{VT}")
    A(f"v_and_b32 v{VT-1}, 15, v0")
    A(f"v_lshl_add_u32 v{VT}, v{VT-1}, 7, v{VT}")
    A(f"s_branch {P}_te")
    A.label(f"{P}_t4")
    A(f"v_lshlrev_b32 v{VT}, 7, v0")
    A(f"s_cmp_ge_u32 s{S_W}, 6")
    A(f"s_cbranch_scc1 {P}_t6")
    srd(A, 40, P_WO, 448 * 896)
    A(f"s_lshl_b32 s65, s64, 14")
    A(f"s_and_b32 s66, s{S_W}, 1")
    A(f"s_lshl_b32 s66, s66, 13")
    A(f"s_add_u32 s{S_TO}, s65, s66")
    A(f"s_branch {P}_te")
    A.label(f"{P}_t6")
    srd(A, 40, P_WOUT, 896 * 896)
    A(f"s_lshl_b32 s65, s64, 15")
    A(f"s_and_b32 s66, s{S_W}, 1")
    A(f"s_lshl_b32 s66, s66, 14")
    A(f"s_add_u32 s{S_TO}, s65, s66")
    A(f"s_add_u32 s{S_TO+1}, s{S_TO}, {64*128}")
    A.label(f"{P}_te")

def touch_issue(A, P):
    A(f"s_cmp_lg_u32 s{S_LC}, s{S_TK}")
    A(f"s_cbranch_scc1 {P}_notouch")
    A(f"buffer_load_dword v160, v161, s[40:43], s{S_TO} offen")
    A(f"s_cmp_lt_u32 s{S_W}, 6")
    A(f"s_cbranch_scc1 {P}_notouch")
    A(f"buffer_load_dword v160, v161, s[40:43], s{S_TO+1} offen")
    A.label(f"{P}_notouch")

def compute_p1(A, typ, par, opt):
    P = f"p1{typ}c{par}"
    isA = typ == "A"
    A("s_waitcnt lgkmcnt(0)")
    srd(A, SRD_X, P_X, 2048 * 896)
    if isA: srd(A, SRD_W, P_WQKV, 448 * 2688)
    else: srd(A, SRD_W, P_WIN, 448 * 3584)
    srd(A, SRD_WS, P_WS, WS_BYTES)
    srd(A, SRD_DBG, P_DBG, 256)
    dbgst(A, 2, SRD_DBG, neg=True); dbgst(A, 3, SRD_DBG)
    A(f"s_and_b32 s{S_RG}, s{S_W}, 3")
    A(f"s_lshr_b32 s{S_J}, s{S_W}, 2")
    A(f"s_lshl_b32 s64, s{S_G}, 1")
    A(f"s_add_u32 s{S_J}, s{S_J}, s64")
    A("v_mov_b32 v7, 0")
    A(f"s_or_b32 s72, s2, s{S_W}")
    A("s_cmp_lg_u32 s72, 0")
    A(f"s_cbranch_scc1 {P}_non")
    A("s_memrealtime s[74:75]")
    A("s_waitcnt lgkmcnt(0)")
    A("s_or_b32 s74, s74, 1")
    A("v_mov_b32 v8, s74"); A("v_mov_b32 v9, s75")
    A("s_mov_b64 exec, 1")
    A(f"buffer_store_dwordx2 v[8:9], v7, {s(SRD_DBG,4)}, 0 offen sc1")
    A("s_mov_b64 exec, -1")
    A.label(f"{P}_non")
    lo = isA or par == 0
    hi = isA or par == 1
    def split(flo, fhi, tagn):
        if isA:
            A(f"s_cmp_ge_u32 s{S_W}, 4")
            A(f"s_cbranch_scc1 {P}_{tagn}h")
            flo()
            A(f"s_branch {P}_{tagn}e")
            A.label(f"{P}_{tagn}h")
            fhi()
            A.label(f"{P}_{tagn}e")
        elif par == 0: flo()
        else: fhi()
    split(lambda: cols_load(A, typ, f"{P}_cl"), lambda: rows_load(A), "ld")
    if lo:
        A(f"s_cmp_lg_u32 s{S_W}, 0")
        A(f"s_cbranch_scc1 {P}_nopoll")
        A(f"s_mov_b32 s{S_PC}, {POLL_MAX}")
        A.label(f"{P}_poll")
        A(f"buffer_load_dwordx2 v[8:9], v7, {s(SRD_DBG,4)}, 0 offen sc1")
        A("s_waitcnt vmcnt(0)")
        A("v_readfirstlane_b32 s74, v8")
        A(f"s_sub_u32 s{S_PC}, s{S_PC}, 1")
        A(f"s_cmp_eq_u32 s{S_PC}, 0")
        A(f"s_cbranch_scc1 {P}_pollx")
        A("s_cmp_eq_u32 s74, 0")
        A(f"s_cbranch_scc1 {P}_poll")
        A.label(f"{P}_pollx")
        A(f"v_mov_b32 v10, {LNON}")
        A("ds_write_b64 v10, v[8:9]")
        A.label(f"{P}_nopoll")
    A("s_waitcnt vmcnt(0)")
    split(lambda: cols_compute(A, typ, f"{P}_cc"), lambda: rows_compute(A), "cp")
    if opt.get("pf", True): touch_setup(A, P)
    compute_addr(A, typ)
    def hook():
        A(f"v_mov_b32 v6, {LNON}")
        A("ds_read_b64 v[6:7], v6")
        A("s_waitcnt lgkmcnt(0)")
        A(f"v_readfirstlane_b32 s{S_TAG}, v6")
        A(f"v_readfirstlane_b32 s{S_TAG+1}, v7")
        split(lambda: cols_publish(A, typ, f"{P}_cq"), lambda: rows_publish(A), "pb")
    srd(A, SRD_BSP, P_BSP, 4096)
    A("v_and_b32 v162, 15, v0")
    A("v_lshlrev_b32 v162, 1, v162")
    A(f"s_lshl_b32 s64, s{S_TB}, 8")
    A(f"s_lshl_b32 s65, s{S_RG}, 6")
    A("s_add_u32 s64, s64, s65")
    A(f"buffer_load_ushort v163, v162, {s(SRD_BSP,4)}, s64 offen offset:32")
    A(f"buffer_load_ushort v162, v162, {s(SRD_BSP,4)}, s64 offen")
    main_loop(A, typ, par, P, hook, opt)
    if isA: A("s_barrier ; BAR g0")
    A("s_waitcnt vmcnt(0)")
    if isA: epilogue_A(A, P, opt); stamp(A, 7)
    elif par == 0: epilogue_Z2(A, P, opt)
    else: epilogue_Z1(A, P, opt)

def stamp_flush12(A, kidx=0):
    if not STAMP["on"]: return
    A("s_waitcnt vmcnt(0)")
    stamp(A, 61)
    A("s_memrealtime s[98:99]")
    A("s_waitcnt lgkmcnt(0)")
    A("v_writelane_b32 v166, s98, 62")
    if STAMP.get("out"):
        srd(A, 40, P_OUT, 2048 * 896)
        A(f"s_mul_i32 s96, s2, 12")
        A(f"s_add_u32 s96, s96, s{S_W}")
        A(f"s_lshl_b32 s96, s96, 9")
        A("v_lshlrev_b32 v167, 3, v0")
        for c in range(3):
            A(f"v_bfe_u32 v165, v166, {11*c}, 11")
            A(f"buffer_store_short v165, v167, s[40:43], s96 offen offset:{2*c}")
            A("s_waitcnt vmcnt(0)")
        return
    A(f"s_lshl_b32 s96, s2, 4")
    A(f"s_add_u32 s96, s96, s{S_W}")
    A(f"s_lshl_b32 s96, s96, 8")
    A(f"s_add_u32 s96, s96, {WS_DBG + kidx*0x100000}")
    A("v_lshlrev_b32 v167, 2, v0")
    A(f"buffer_store_dword v166, v167, {s(SRD_WS,4)}, s96 offen")
```

```python
from g_h import *
import g_h, g_f2
from g_f2 import poll_all, afrag_addr, img_voff, IMG

VZ, VL16, VL8 = 2, 5, 6
VWA = [[104, 105], [106, 107]]
WFR = [8, 16]
ZFR = [24, 40]
ACC2, Z1R = 56, 88
OACC, OTMP = 132, 56
VAO = [120, 121, 122, 123]
OFR = [132, 136, 140, 144, 148, 152, 108, 112]
OAF = 24
S_TS = 63
S_FZ1A, S_FUA, S_Z1B, S_UB, S_FOA, S_OB = 76, 77, 79, 81, 84, 85
def acc2(ul, T): return ACC2 + 4 * (2 * ul + T)
def oacc(dt, T): return OACC + 4 * (2 * dt + T)
def otmp(dt, T): return OTMP + 4 * (2 * dt + T)

def stamp_dyn(A, base, sreg, mode=True):
    if not (STAMP["on"] and STAMP.get("p2st") == mode): return
    A(f"s_sub_u32 s95, {base}, s{sreg}")
    A("s_memtime s[96:97]")
    A("s_waitcnt lgkmcnt(0)")
    A("v_mov_b32 v165, s96")
    A("v_cmp_eq_u32 vcc, s95, v0")
    A(f"v_cndmask_b32 v{STAMP['v']}, v{STAMP['v']}, v165, vcc")
def stamp_p2(A, idx, mode=True):
    if STAMP["on"] and STAMP.get("p2st") == mode: stamp(A, idx)

def check_flags(A, P, vr, vaddr, sbase):
    A(f"v_cmp_eq_u32 vcc, s{S_TAG}, v{vr}")
    A(f"v_cmp_eq_u32 s[90:91], s{S_TAG+1}, v{vr+1}")
    A("s_and_b64 vcc, vcc, s[90:91]")
    A("s_cmp_eq_u64 vcc, -1")
    A(f"s_cbranch_scc1 {P}_fok")
    poll_all(A, P, vaddr, sbase, 64, vr)
    A.label(f"{P}_fok")

WF, ZR, AC2 = 8, 24, 96
VW0, VW1 = 3, 4
def acc2(u, T): return AC2 + 4 * (2 * u + T)
RB0, RB1 = 16384, 45056
OFR = [8 + 4 * i for i in range(8)]
OAF = 68
VAO = [100, 101, 102, 103]
S_TT = 64

def p2_compute(A, kk, opt):
    P = f"p2c{kk}"
    bp = opt.get("bp", 4)
    A(f"v_lshlrev_b32 v{VL16}, 4, v0")
    A(f"v_lshlrev_b32 v{VL8}, 3, v0")
    A(f"s_and_b32 s{S_TS}, s{S_W}, 3")
    A(f"v_add_u32 v{VZ}, {ZRING + kk*7168}, v{VL16}")
    A("v_and_b32 v40, 15, v0")
    A("v_lshrrev_b32 v41, 4, v0")
    A("v_lshrrev_b32 v42, 1, v41")
    if kk: A("v_add_u32 v42, 4, v42")
    A("v_lshrrev_b32 v43, 1, v40")
    A("v_xor_b32 v42, v42, v43")
    A("v_lshlrev_b32 v42, 4, v42")
    A("v_and_b32 v41, 1, v41")
    A("v_lshl_add_u32 v42, v41, 3, v42")
    A("v_lshl_add_u32 v42, v40, 7, v42")
    A(f"s_lshl_b32 s66, s{S_TS}, 12")
    A(f"v_add_u32 v{VW0}, s66, v42")
    A(f"v_xor_b32 v{VW1}, 32, v{VW0}")
    A(f"s_cmp_eq_u32 s{S_KH}, 0")
    A("s_cselect_b32 s66, -1, 0")
    A(f"v_lshlrev_b32 v7, 16, v{162+kk}")
    A("v_and_b32 v7, s66, v7")
    for u in range(7):
        for T in range(2):
            for r in range(4):
                A(f"v_mov_b32 v{acc2(u,T)+r}, " + ("v7" if T == kk else "0"))
    A(f"s_lshl_b32 s72, s{S_TB}, 2")
    A(f"s_add_u32 s72, s72, s{S_TS}")
    A("s_lshl_b32 s73, s72, 3")
    A(f"s_add_u32 s73, s73, s{S_FB}")
    A(f"s_lshl_b32 s{S_FZ1A}, s73, 3")
    A(f"s_add_u32 s{S_FZ1A}, s{S_FZ1A}, {WS_FZ1}")
    A("s_lshl_b32 s73, s72, 1")
    if kk: A("s_add_u32 s73, s73, 1")
    A("s_lshl_b32 s73, s73, 3")
    A(f"s_add_u32 s73, s73, s{S_FB}")
    A(f"s_lshl_b32 s{S_FUA}, s73, 1")
    A(f"s_add_u32 s{S_FUA}, s{S_FUA}, s{S_KH}")
    A(f"s_lshl_b32 s{S_FUA}, s{S_FUA}, 3")
    A(f"s_add_u32 s{S_FUA}, s{S_FUA}, {WS_FU2}")
    A("s_mul_i32 s73, s73, 3584")
    A(f"s_add_u32 s{S_Z1B}, s73, {WS_Z1}")
    A(f"s_mul_i32 s{S_UB}, s{S_KH}, {128*8*3584}")
    A(f"s_add_u32 s{S_UB}, s{S_UB}, s73")
    A(f"s_add_u32 s{S_UB}, s{S_UB}, {WS_U}")
    A(f"s_lshr_b32 s67, s{S_W}, 1")
    A(f"s_and_b32 s66, s{S_W}, 1")
    A(f"s_lshl_b32 s68, s{S_TB3}, 1")
    A("s_add_u32 s68, s68, s66")
    A("s_lshl_b32 s70, s67, 2")
    A(f"s_lshl_b32 s{S_FOA}, s68, 4")
    A(f"s_add_u32 s{S_FOA}, s{S_FOA}, s70")
    A(f"s_lshl_b32 s{S_FOA}, s{S_FOA}, 3")
    A(f"s_add_u32 s{S_FOA}, s{S_FOA}, {WS_FO2}")
    A(f"s_lshl_b32 s{S_OB}, s68, 5")
    A(f"s_add_u32 s{S_OB}, s{S_OB}, s70")
    A(f"s_lshl_b32 s{S_OB}, s{S_OB}, 10")
    A(f"s_add_u32 s{S_OB}, s{S_OB}, {WS_O}")
    A(f"s_add_u32 s{S_OB+1}, s{S_OB}, 16384")
    A("v_mov_b32 v156, 0")
    A("v_and_b32 v157, 3, v0")
    A("v_lshlrev_b32 v157, 3, v157")
    L = LG(A)
    def w_items(par):
        out = []
        for T in range(2):
            r = WF + 8 * par + 4 * T
            out.append(('r', f"ds_read_b64 {v(r,2)}, v{VW0} offset:{2048*T}", "w"))
            out.append(('r', f"ds_read_b64 {v(r+2,2)}, v{VW1} offset:{2048*T}", "w"))
        return out
    def z_item(u): return ('r', f"ds_read_b128 {v(ZR+4*u,4)}, v{VZ} offset:{1024*u}", ("z", u))
    def mm(u, par): return [('m', f"v_mfma_f32_16x16x32_bf16 {v(acc2(u,T),4)}, {v(ZR+4*u,4)}, {v(WF+8*par+4*T,4)}, {v(acc2(u,T),4)}") for T in range(2)]
    def emit(items):
        for it in items:
            if it[0] == 'r': A(it[1]); L.issue(it[2])
            elif it[0] == 'w': L.wait(it[1])
            else: A(it[1])
    def tail_items(par, reads=True):
        rds = (w_items(1 - par) + [z_item(u) for u in range(bp)]) if reads else []
        out = []
        for u in range(bp, 7):
            out.append(('w', ("z", u)))
            for m in mm(u, par):
                out.append(m)
                for _ in range(opt.get("p2per", 2)):
                    if rds: out.append(rds.pop(0))
            if reads: rds.append(z_item(u))
        return out + rds
    def advance():
        A("s_add_u32 s66, s66, 1")
        A("s_cmp_eq_u32 s66, 5")
        A(f"s_cselect_b32 s67, {-4*WSL}, s70")
        A(f"s_cselect_b32 s68, {-4*ZSL}, s71")
        A("s_cselect_b32 s66, 0, s66")
        A(f"v_add_u32 v{VW0}, s67, v{VW0}"); A(f"v_add_u32 v{VW1}, s67, v{VW1}")
        A(f"v_add_u32 v{VZ}, s68, v{VZ}")
    def head(par):
        for u in range(bp):
            if u == 0: L.wait("w")
            L.wait(("z", u))
            emit(mm(u, par))
    A("s_mov_b32 s66, 0")
    A(f"s_mov_b32 s70, {WSL}"); A(f"s_mov_b32 s71, {ZSL}")
    A(f"s_mov_b32 s69, 7")
    stamp(A, 12)
    A("s_barrier ; BAR p2")
    stamp(A, 13)
    emit([it for it in tail_items(1) if it[0] == 'r'])
    start = list(L.p)
    A(f"s_cmp_ge_u32 s{S_C}, 8")
    A(f"s_cbranch_scc1 {P}_dB")
    for T in range(2):
        A(f"buffer_store_dwordx4 {v(64+4*T,4)}, v{VL16}, {s(SRD_WS,4)}, s{74+T} offen sc1")
    if kk == 1:
        A(f"s_branch {P}_dE")
    A.label(f"{P}_dB")
    if kk == 1:
        for T in range(2):
            for p in range(3):
                A(f"buffer_store_dwordx4 {v(64+16*T+4*p,4)}, v{VL16}, {s(SRD_WS,4)}, s{74+T} offen offset:{1024*p} sc1")
            A(f"buffer_store_dwordx2 {v(64+16*T+12,2)}, v{VL8}, {s(SRD_WS,4)}, s{74+T} offen offset:3072 sc1")
        A.label(f"{P}_dE")
    HK1 = opt.get("hk1", 5); HK2 = opt.get("hk2", 10); HK3 = opt.get("hk3", 13)
    Z1 = 52
    def z1_loads():
        A("s_waitcnt vmcnt(0)")
        check_flags(A, P + "z", 152, 156, S_FZ1A)
        for p in range(3):
            A(f"buffer_load_dwordx4 {v(Z1+4*p,4)}, v{VL16}, {s(SRD_WS,4)}, s{S_Z1B} offen offset:{1024*p} sc1")
        A(f"buffer_load_dwordx2 {v(Z1+12,2)}, v{VL8}, {s(SRD_WS,4)}, s{S_Z1B} offen offset:3072 sc1")
    A.label(f"{P}_loop")
    for par in range(2):
        head(par)
        A("s_barrier ; BAR p2")
        advance()
        if par == (HK1 & 1):
            A(f"s_cmp_lg_u32 s69, {7 - HK1 // 2}")
            A(f"s_cbranch_scc1 {P}_nh1")
            A("s_waitcnt vmcnt(0)")
            flag_store(A, S_FLG, 52)
            A.label(f"{P}_nh1")
        if par == (HK2 & 1):
            A(f"s_cmp_lg_u32 s69, {7 - HK2 // 2}")
            A(f"s_cbranch_scc1 {P}_nh2")
            A(f"buffer_load_dwordx2 v[152:153], v156, {s(SRD_WS,4)}, s{S_FZ1A} offen sc1")
            A(f"buffer_load_dwordx2 v[154:155], v157, {s(SRD_WS,4)}, s{S_FOA} offen sc1")
            A.label(f"{P}_nh2")
        if par == (HK3 & 1) and HK3 < 14:
            A(f"s_cmp_lg_u32 s69, {7 - HK3 // 2}")
            A(f"s_cbranch_scc1 {P}_nh3")
            z1_loads()
            A.label(f"{P}_nh3")
        emit(tail_items(par))
    A("s_sub_u32 s69, s69, 1")
    A("s_cmp_lg_u32 s69, 0")
    A(f"s_cbranch_scc1 {P}_loop")
    assert start == L.p, (start, L.p)
    head(0)
    L.wait_all()
    A("s_barrier ; BAR p2")
    advance()
    if HK3 >= 14: z1_loads()
    emit(tail_items(0))
    head(1)
    emit(tail_items(1, reads=False))
    L.wait_all()
    stamp(A, 14)
    A(f"s_mul_i32 s66, s{S_TS}, 7168")
    A(f"s_add_u32 s67, s66, {RB1 if kk else RB0}")
    A(f"s_add_u32 s68, s66, {RB0 if kk else RB1}")
    A(f"v_add_u32 v{VZ}, s67, v{VL16}")
    A(f"v_add_u32 v{VW0}, s68, v{VL16}")
    for u in range(7):
        A(f"ds_write_b128 v{VZ}, {v(acc2(u,1-kk),4)} offset:{1024*u}")
    A("s_waitcnt lgkmcnt(0)")
    stamp(A, 8)
    A("s_barrier ; BAR e1")
    for u in range(7):
        A(f"ds_read_b128 {v(acc2(u,1-kk),4)}, v{VW0} offset:{1024*u}")
    A("s_waitcnt lgkmcnt(0)")
    A("s_barrier ; BAR e2")
    stamp(A, 15)
    A("s_waitcnt vmcnt(0)")
    TM = [8 + 4 * i for i in range(8)]
    D = 40
    for u in range(7):
        a_ = acc2(u, kk); o_ = acc2(u, 1 - kk); t = TM[u]
        z = Z1 + 2 * u
        pk(A, "add", a_, ('p', a_), ('p', o_))
        pk(A, "add", a_ + 2, ('p', a_ + 2), ('p', o_ + 2))
        A(f"v_lshlrev_b32 v{t}, 16, v{z}")
        A(f"v_and_b32 v{t+1}, 0xffff0000, v{z}")
        A(f"v_lshlrev_b32 v{t+2}, 16, v{z+1}")
        A(f"v_and_b32 v{t+3}, 0xffff0000, v{z+1}")
        pk(A, "mul", a_, ('p', a_), ('p', t))
        pk(A, "mul", a_ + 2, ('p', a_ + 2), ('p', t + 2))
        d = D + 2 * u if u < 6 else 66
        cvt2(A, d, a_, a_ + 1); cvt2(A, d + 1, a_ + 2, a_ + 3)
        if u & 1:
            A(f"buffer_store_dwordx4 {v(d-2,4)}, v{VL16}, {s(SRD_WS,4)}, s{S_UB} offen offset:{1024*(u>>1)} sc1")
        if u == 6:
            A(f"buffer_store_dwordx2 {v(d,2)}, v{VL8}, {s(SRD_WS,4)}, s{S_UB} offen offset:3072 sc1")
    stamp(A, 9)

def oacc(dt, T): return OACC + 4 * (2 * dt + T)
def o_part(A, opt):
    P = "op"
    A(f"s_cmp_ge_u32 s{S_DB}, 7")
    A(f"s_cbranch_scc1 {P}_skip")
    A("s_barrier ; BAR g1")
    stamp(A, 10)
    check_flags(A, P + "o", 154, 157, S_FOA)
    for hh in range(4):
        for T in range(2):
            A(f"buffer_load_dwordx4 {v(OFR[2*hh+T],4)}, v{VL16}, {s(SRD_WS,4)}, s{S_OB+T} offen offset:{1024*hh} sc1")
    A(f"s_lshr_b32 s67, s{S_W}, 1")
    A(f"s_mul_i32 s72, s67, {112*128}")
    A(f"s_add_u32 s72, s72, {WOIMG}")
    afrag_addr(A, VAO, 72, t=(104, 105, 106, 107))
    L = LG(A)
    def rd_a(hh):
        for dt in range(4):
            for b in range(2):
                r = OAF + 16 * (hh & 1) + 4 * dt + 2 * b
                vr = VAO[dt ^ (2 * (hh & 1))]
                A(f"ds_read_b64_tr_b16 {v(r,2)}, v{vr} offset:{hh*28*128 + 2048*b}")
                L.issue(("a", hh))
    rd_a(0); rd_a(1)
    A("s_waitcnt vmcnt(8)")
    flag_store(A, S_FUA, 104)
    stamp(A, 16)
    A("s_waitcnt vmcnt(1)")
    for hh in range(4):
        L.wait(("a", hh))
        for dt in range(4):
            for T in range(2):
                mfma(A, oacc(dt, T), OAF + 16 * (hh & 1) + 4 * dt, OFR[2 * hh + T], None if hh == 0 else oacc(dt, T))
        if hh + 2 < 4: rd_a(hh + 2)
    A("s_waitcnt lgkmcnt(0)")
    stamp(A, 11)
    A("s_barrier ; BAR g2")
    A(f"s_branch {P}_done")
    A.label(f"{P}_skip")
    A("s_waitcnt vmcnt(0)")
    flag_store(A, S_FUA, 104)
    A.label(f"{P}_done")

def loader_rest(A, ell, opt):
    P = f"lr{ell}"
    rot = opt.get("rot", True)
    AH = opt.get("ahw", 3) if ell < 2 else opt.get("ahz", 3)
    srd(A, SRD_WO, P_WO, 448 * 896)
    srd(A, SRD_WSP, P_WSP, 2048 * 4096)
    srd(A, SRD_WOUT, P_WOUT, 896 * 896)
    img_voff(A, 8)
    A(f"s_mov_b32 s68, 0")
    if rot:
        A("s_bfe_u32 s68, s2, 0x10001")
        A("s_lshl_b32 s68, s68, 3")
    if ell < 2:
        npc = 8
        A("v_lshrrev_b32 v9, 3, v0")
        A("v_lshrrev_b32 v10, 4, v0")
        A("v_and_b32 v11, 7, v0")
        A("v_xor_b32 v11, v11, v10")
        A("v_xor_b32 v12, 4, v11")
        A("v_lshlrev_b32 v9, 12, v9")
        A("v_lshl_add_u32 v13, v11, 4, v9")
        A("v_lshl_add_u32 v14, v12, 4, v9")
        A("v_add_u32 v14, 32768, v14")
        A(f"s_lshl_b32 s74, s{S_TB}, 19")
        A(f"s_lshl_b32 s75, s{S_KH}, 11")
        A("s_add_u32 s74, s74, s75")
        if ell: A(f"s_add_u32 s74, s74, {4*65536}")
        A("s_lshl_b32 s75, s68, 7")
        A("s_add_u32 s74, s74, s75")
        A("s_mov_b32 s70, 128")
        for m in range(1, 4): A(f"s_add_u32 s{74+m}, s74, {m*65536}")
        def issue():
            for m in range(4):
                for par in range(2):
                    A(f"s_add_u32 m0, s64, {WRING + (2*(4*ell+m)+par)*1024}")
                    A(f"buffer_load_dwordx4 v{13+par}, {s(SRD_WSP,4)}, s{74+m} offen lds")
            A("s_add_u32 s68, s68, 1")
            A("s_and_b32 s68, s68, 15")
            A(f"s_cselect_b32 s69, s70, {128-2048}")
            for m in range(4): A(f"s_add_u32 s{74+m}, s{74+m}, s69")
            A(f"s_add_u32 s64, s64, {WSL}")
            A(f"s_cmp_eq_u32 s64, {WSL*5}")
            A("s_cselect_b32 s64, 0, s64")
    else:
        npc = 7
        kk = ell - 2
        A("v_lshlrev_b32 v13, 4, v0")
        A(f"s_mul_i32 s74, s{S_KH}, {32*56*1024}")
        A(f"s_mul_i32 s75, s{S_FB}, {7*1024}")
        A("s_add_u32 s74, s74, s75")
        A(f"s_add_u32 s74, s74, {WS_Z2N + kk*56*1024}")
        A(f"s_mul_i32 s75, s68, {2*56*1024}")
        A("s_add_u32 s74, s74, s75")
        A(f"s_mov_b32 s70, {2*56*1024}")
        A("s_add_u32 s75, s74, 4096")
        A(f"s_lshl_b32 s78, s{S_FB}, 9")
        A(f"s_lshl_b32 s79, s{S_KH}, 8")
        A("s_add_u32 s78, s78, s79")
        A(f"s_add_u32 s78, s78, {WS_FZ2}")
        A("v_and_b32 v15, 31, v0")
        A("v_lshlrev_b32 v15, 3, v15")
        A("s_mov_b64 s[80:81], 0")
        A(f"s_mov_b32 s{S_PC}, {POLL_MAX}")
        cnt = [0]
        def issue():
            cnt[0] += 1
            Q = f"{P}_z{cnt[0]}"
            A("s_lshl_b32 s82, s68, 1")
            if kk: A("s_add_u32 s82, s82, 1")
            A.label(f"{Q}_chk")
            A("s_bitcmp1_b64 s[80:81], s82")
            A(f"s_cbranch_scc1 {Q}_ok")
            A(f"s_cmp_eq_u32 s{S_PC}, 0")
            A(f"s_cbranch_scc1 {Q}_ok")
            A(f"s_sub_u32 s{S_PC}, s{S_PC}, 1")
            A(f"buffer_load_dwordx2 v[16:17], v15, {s(SRD_WS,4)}, s78 offen sc1")
            A("s_waitcnt vmcnt(0)")
            A(f"v_cmp_eq_u32 vcc, s{S_TAG}, v16")
            A(f"v_cmp_eq_u32 s[90:91], s{S_TAG+1}, v17")
            A("s_and_b64 s[80:81], vcc, s[90:91]")
            A(f"s_branch {Q}_chk")
            A.label(f"{Q}_ok")
            for u in range(7):
                if u % 4 == 0: A(f"s_add_u32 m0, s64, {ZRING + kk*7168 + u*1024}")
                A(f"buffer_load_dwordx4 v13, {s(SRD_WS,4)}, s{74 + (u>>2)} offen offset:{(u&3)*1024} sc1 lds")
            A("s_add_u32 s68, s68, 1")
            A("s_and_b32 s68, s68, 15")
            A(f"s_cselect_b32 s69, s70, {(2-32)*56*1024}")
            for m in range(2): A(f"s_add_u32 s{74+m}, s{74+m}, s69")
            A(f"s_add_u32 s64, s64, {ZSL}")
            A(f"s_cmp_eq_u32 s64, {ZSL*5}")
            A("s_cselect_b32 s64, 0, s64")
    A("s_mov_b32 s64, 0")
    if ell < 2:
        for _ in range(5): issue()
    stamp(A, 20)
    A("s_barrier ; BAR g0")
    A(f"s_cmp_ge_u32 s{S_DB}, 7")
    A(f"s_cbranch_scc1 {P}_noimg")
    for k in range(28):
        A(f"s_mov_b32 s73, {(28*ell + k)*8*896}")
        A(f"buffer_load_dwordx4 {v(IMG+4*k,4)}, v8, {s(SRD_WOUT,4)}, s73 offen")
    A.label(f"{P}_noimg")
    stamp(A, 21)
    if ell < 2:
        A("s_waitcnt vmcnt(0)")
        n0 = 5 - AH
    else:
        if opt.get("dly"):
            A("s_memrealtime s[92:93]")
            A("s_waitcnt lgkmcnt(0)")
            A(f"s_add_u32 s94, s92, {opt['dly']}")
            A.label(f"{P}_dly")
            A("s_memrealtime s[92:93]")
            A("s_waitcnt lgkmcnt(0)")
            A("s_sub_u32 s92, s92, s94")
            A("s_cmp_ge_u32 s92, 0x80000000")
            A(f"s_cbranch_scc1 {P}_dly")
        for _ in range(AH): issue()
        A(f"s_waitcnt vmcnt({(AH-1)*npc})")
        n0 = 0
    stamp(A, 12)
    A("s_barrier ; BAR p2")
    stamp(A, 13)
    for k in range(n0):
        A("s_barrier ; BAR p2")
        if ell == 1: stamp_p2(A, 31 + k, 2)
    A(f"s_mov_b32 s65, {16 - AH - n0}")
    A.label(f"{P}_loop")
    issue()
    stamp_dyn(A, 46 + 1 + 16 - AH, 65) if False else None
    A(f"s_waitcnt vmcnt({(AH-1)*npc})")
    stamp_dyn(A, 30 + 1 + 16 - AH, 65)
    A("s_barrier ; BAR p2")
    if ell == 1: stamp_dyn(A, 30 + 1 + 16 - AH, 65, 2)
    A("s_sub_u32 s65, s65, 1")
    A("s_cmp_lg_u32 s65, 0")
    A(f"s_cbranch_scc1 {P}_loop")
    for n in range(16 - AH, 15):
        A(f"s_waitcnt vmcnt({(15-(n+1))*npc})")
        stamp_p2(A, 30 + n + 1)
        A("s_barrier ; BAR p2")
        if ell == 1: stamp_p2(A, 30 + n + 1, 2)
    stamp(A, 14)
    A(f"s_cmp_ge_u32 s{S_DB}, 7")
    A(f"s_cbranch_scc1 {P}_nowo")
    for pc in range(ell, 57, 4):
        A(f"s_mov_b32 m0, {WOIMG + pc*1024}")
        A(f"s_mov_b32 s73, {pc*8*896}")
        A(f"buffer_load_dwordx4 v8, {s(SRD_WO,4)}, s73 offen lds")
    A.label(f"{P}_nowo")
    stamp(A, 15)
    A("s_barrier ; BAR e1")
    if ell == 1: stamp_p2(A, 46, 2)
    A("s_barrier ; BAR e2")
    A(f"s_cmp_ge_u32 s{S_DB}, 7")
    A(f"s_cbranch_scc1 {P}_end")
    A("v_lshlrev_b32 v9, 4, v0")
    A(f"v_add_u32 v9, {28*ell*1024}, v9")
    ndef = NDEF if ell == 3 else 0
    for k in range(28 - ndef):
        A(f"ds_write_b128 v9, {v(IMG+4*k,4)} offset:{k*1024}")
    A("s_waitcnt vmcnt(0) lgkmcnt(0)")
    stamp(A, 10)
    A("s_barrier ; BAR g1")
    A("s_barrier ; BAR g2")
    for k in range(28 - ndef, 28):
        A(f"ds_write_b128 v9, {v(IMG+4*k,4)} offset:{k*1024}")
    if ell == 0:
        A(f"s_lshl_b32 s72, s{S_TB3}, 9")
        A(f"s_add_u32 s72, s72, {WS_FU2}")
        A("v_lshlrev_b32 v15, 3, v0")
        poll_all(A, P + "u", 15, 72, 64, 16)
    A("s_waitcnt lgkmcnt(0)")
    stamp(A, 17)
    A("s_barrier ; BAR p3")
    A.label(f"{P}_end")

def gen_h(opt, kidx=0, name="f_kernel"):
    A = Asm()
    prologue(A, "f_end")
    stamp_init(A)
    wg_map(A)
    A(f"s_cmp_ge_u32 s{S_W}, 8")
    A("s_cbranch_scc1 f_load")
    A(f"s_cmp_ge_u32 s{S_C}, 8")
    A("s_cbranch_scc1 f_cB")
    compute_p1(A, "A", 0, opt)
    A(f"s_cmp_ge_u32 s{S_W}, 4")
    A("s_cbranch_scc1 f_p2b")
    A("s_branch f_p2a")
    A.label("f_cB")
    A(f"s_cmp_ge_u32 s{S_W}, 4")
    A("s_cbranch_scc1 f_cB1")
    compute_p1(A, "B", 0, opt)
    A.label("f_p2a")
    p2_compute(A, 0, opt)
    A("s_branch f_p3")
    A.label("f_cB1")
    compute_p1(A, "B", 1, opt)
    A.label("f_p2b")
    p2_compute(A, 1, opt)
    A.label("f_p3")
    o_part(A, opt)
    g_f2.p3_compute(A, opt)
    stamp_flush12(A, kidx)
    A("s_endpgm")
    A.label("f_load")
    for typ in "AB":
        if typ == "A":
            A(f"s_cmp_ge_u32 s{S_C}, 8")
            A("s_cbranch_scc1 f_lB")
        else:
            A.label("f_lB")
        for ell in range(4):
            if ell < 3:
                A(f"s_cmp_lg_u32 s{S_W}, {8+ell}")
                A(f"s_cbranch_scc1 f_l{typ}{ell+1}")
            loader_p1(A, typ, ell, opt)
            A(f"s_branch f_lr{ell}")
            if ell < 3: A.label(f"f_l{typ}{ell+1}")
    for ell in range(4):
        A.label(f"f_lr{ell}")
        loader_rest(A, ell, opt)
        stamp_flush12(A, kidx)
        A("s_endpgm")
    A.label("f_end")
    A("s_endpgm")
    return (name, A.text(), 256, 768, F_LDS, 168)
```

```python
from gl import *
import g_p1, sys
NAME = "parallel_sum__sliding_local_dilated__mixer_gmlp__prompt_kernel"
def single(k, path):
    name, body, grid, block, lds, vg = k
    import hazard
    txt = f"; @launch grid=({grid},1,1) block=({block},1,1) lds={lds}\n"
    txt += '.amdgcn_target "amdgcn-amd-amdhsa--gfx950"\n.text\n'
    txt += kernel_header(NAME) + hazard.fix(body, True) + "\n"
    txt += '.section .rodata,"a"\n' + kernel_desc(NAME, vg)
    open(path, "w").write(txt)
if __name__ == "__main__":
    STAMP["on"] = True; STAMP["v"] = 166; STAMP["out"] = True
    single(g_p1.gen_k1({}), "n1_out.s")
```

```python
from gl import *
import g_h2, sys, hazard
from mkout import single, NAME
def gen(opt, path, st=False, out=False, p2st=False):
    STAMP["p2st"] = p2st
    STAMP["on"] = st; STAMP["v"] = 166; STAMP["out"] = out
    single(g_h2.gen_h(opt, name=NAME), path)
if __name__ == "__main__":
    gen({}, "h.s")
    gen({}, "h_st.s", st=True, p2st=2)
    gen({"hk3": 12}, "h_st12.s", st=True, p2st=2)
    gen({"hk3": 11, "hk2": 8}, "h_st11.s", st=True, p2st=2)
```
